```python
import torch

def _softmax(x, axis=-1):
    return torch.softmax(x, dim=axis)
def _gelu(x):
    return torch.nn.functional.gelu(x, approximate="tanh")
def _silu(x):
    return torch.nn.functional.silu(x)
def _sigmoid(x):
    return torch.sigmoid(x)
def _layernorm(x, axis=-1, eps=1e-5):
    m = x.mean(dim=axis, keepdim=True)
    v = x.var(dim=axis, keepdim=True, unbiased=False)
    return (x - m) / torch.sqrt(v + eps)
def _scatter_add(tgt, idx, src, axis=0):
    return tgt.clone().index_add_(axis, idx, src)
def _segment_sum(src, seg, n):
    out = torch.zeros((n,) + src.shape[1:], dtype=src.dtype)
    return out.index_add_(0, seg, src)
def _pad(x, pw):
    flat = tuple(v for pair in reversed(pw) for v in pair)
    return torch.nn.functional.pad(x, flat)

kernel_name = 'parallel_sum__gqa_block_cached__dense_activation_gelu__decode'

def setup_inputs():

    _w = (lambda a: (lambda t: t.to(torch.bfloat16) if t.is_floating_point() else t)(torch.as_tensor(a)))
    def _A_setup():
        B, Sq, D = 1, 1, 512
        Hq, Hkv, Sk, Dh = 32, 8, 65536, 128
        assert Hq % Hkv == 0, (Hq, Hkv)
        return {
            "x": _w((lambda *s: torch.randn(*s, dtype=torch.bfloat16) * 0.05)(B, Sq, D)),
            "k_cache": _w((lambda *s: torch.randn(*s, dtype=torch.bfloat16) * 3.2)(B, Hkv, Sk, Dh)),
            "v_cache": _w((lambda *s: torch.randn(*s, dtype=torch.bfloat16) * 0.8)(B, Hkv, Sk, Dh)),
            "wq": _w((lambda *s: torch.randn(*s, dtype=torch.bfloat16) * 3.2)(D, Hq * Dh) * (D ** -0.5)),
            "wo": _w((lambda *s: torch.randn(*s, dtype=torch.bfloat16) * 0.8)(Hq * Dh, D) * ((Hq * Dh) ** -0.5)),
        }
    _A_in = _A_setup()

    def _B_setup():
        B, S, D, F = 1, 1, 512, 1792
        return {
            "x": _w((lambda *s: torch.randn(*s, dtype=torch.bfloat16) * 0.05)(B, S, D)),
            "w1": _w((lambda *s: torch.randn(*s, dtype=torch.bfloat16) * 3.2)(D, F) * (D ** -0.5)),
            "b1": _w((lambda *s: torch.randn(*s, dtype=torch.bfloat16) * 3.2)(F) * 0.01),
            "w2": _w((lambda *s: torch.randn(*s, dtype=torch.bfloat16) * 0.4)(F, D) * (F ** -0.5)),
            "b2": _w((lambda *s: torch.randn(*s, dtype=torch.bfloat16) * 0.4)(D) * 0.01),
        }
    _B_in = _B_setup()

    return {
        "A_x": _A_in["x"],
        "A_k_cache": _A_in["k_cache"],
        "A_v_cache": _A_in["v_cache"],
        "A_wq": _A_in["wq"],
        "A_wo": _A_in["wo"],
        "B_x": _B_in["x"],
        "B_w1": _B_in["w1"],
        "B_b1": _B_in["b1"],
        "B_w2": _B_in["w2"],
        "B_b2": _B_in["b2"],
    }

def reference(A_x, A_k_cache, A_v_cache, A_wq, A_wo, B_x, B_w1, B_b1, B_w2, B_b2):
    def _A_ref(x, k_cache, v_cache, wq, wo):
        B, Sq, D = x.shape
        Hq, Dh = 32, 128
        Hkv = k_cache.shape[1]
        rep = Hq // Hkv
        q = (lambda x, *d: x.permute(*d))((x @ wq).reshape(B, Sq, Hq, Dh), 0, 2, 1, 3)
        k = (lambda x, n, axis: torch.repeat_interleave(x, n, dim=axis))(k_cache, rep, axis=1)
        v = (lambda x, n, axis: torch.repeat_interleave(x, n, dim=axis))(v_cache, rep, axis=1)
        scores = torch.einsum("bhqd,bhkd->bhqk", q, k) * (Dh ** -0.5)
        p = _softmax(scores, axis=-1)
        o = torch.einsum("bhqk,bhkd->bhqd", p, v)
        return (lambda x, *d: x.permute(*d))(o, 0, 2, 1, 3).reshape(B, Sq, Hq * Dh) @ wo

    def _B_ref(x, w1, b1, w2, b2):
        h = torch.einsum("bsd,df->bsf", x, w1) + b1
        h = _gelu(h)
        return torch.einsum("bsf,fd->bsd", h, w2) + b2

    x = A_x
    xn = _layernorm(x, axis=-1)
    return x + _A_ref(xn, A_k_cache, A_v_cache, A_wq, A_wo) + _B_ref(xn, B_w1, B_b1, B_w2, B_b2)
```

```python
import re

TRANS = ("v_exp_f32", "v_log_f32", "v_rcp_f32", "v_rsq_f32", "v_sqrt_f32")


def regs(tok):
    tok = tok.strip()
    m = re.fullmatch(r"-?\|?([vs])(\d+)\|?", tok)
    if m:
        return {(m.group(1), int(m.group(2)))}
    m = re.fullmatch(r"([vs])\[(\d+):(\d+)\]", tok)
    if m:
        return {(m.group(1), i) for i in range(int(m.group(2)), int(m.group(3)) + 1)}
    if tok == "vcc":
        return {("s", "vcc")}
    if tok == "m0":
        return {("s", "m0")}
    if tok == "exec":
        return {("s", "exec")}
    return set()


class Ins:
    def __init__(self, text):
        self.text = text
        parts = text.split(None, 1)
        self.op = parts[0]
        rest = parts[1] if len(parts) > 1 else ""
        toks = [t.strip() for t in rest.split(",")] if rest else []
        self.mods = ""
        if toks:
            fixed = []
            depth = 0
            for t in toks:
                if depth:
                    fixed[-1] += "," + t
                else:
                    fixed.append(t)
                depth += t.count("[") - t.count("]")
            toks = fixed
            last = toks[-1].split(None, 1)
            toks[-1] = last[0]
            self.mods = last[1] if len(last) > 1 else ""
        op = self.op
        self.valu = op.startswith("v_") and not op.startswith("v_mfma")
        self.mfma = op.startswith("v_mfma")
        self.vmem = op.startswith(("buffer_", "global_"))
        self.ds = op.startswith("ds_")
        self.salu = op.startswith("s_")
        self.dpp = "_dpp" in op
        self.perml = op.startswith("v_permlane")
        self.trans = op.startswith(TRANS)
        self.dot = op.startswith("v_dot")
        self.rdlane = op.startswith(("v_readlane", "v_readfirstlane"))
        self.ldsdma = self.vmem and re.search(r"\blds\b", self.mods) is not None
        R = [regs(t) for t in toks]
        U = lambda xs: set().union(*xs) if xs else set()
        self.srcc = set()
        self.stdata = set()
        if self.mfma:
            self.dst, self.src, self.srcc = R[0], U(R[1:3]), R[3]
        elif self.perml:
            self.dst, self.src = U(R), U(R)
        elif self.valu:
            self.dst, self.src = R[0], U(R[1:])
            if op.startswith(("v_fmac", "v_dot2c")) or self.dpp:
                self.src |= R[0]
            if self.dot and len(R) == 4:
                self.srcc = R[3]
        elif self.vmem:
            if self.ldsdma:
                self.dst, self.src = set(), U(R) | {("s", "m0")}
            elif "store" in op or "atomic" in op:
                self.dst, self.src = set(), U(R)
                if "x4" in op or "x3" in op:
                    self.stdata = R[0] if op.startswith("buffer_") else R[1]
            else:
                self.dst, self.src = R[0], U(R[1:])
        elif self.ds:
            if "read" in op:
                self.dst, self.src = R[0], U(R[1:])
            else:
                self.dst, self.src = set(), U(R)
        else:
            nodst = op.startswith(("s_cmp", "s_cbranch", "s_branch", "s_waitcnt", "s_nop", "s_barrier",
                                   "s_sleep", "s_endpgm", "s_setprio"))
            self.dst = set() if nodst or not R else R[0]
            self.src = U(R if nodst else R[1:])
        self.states = int(toks[0]) + 1 if op == "s_nop" else 1


def need(p, c):
    n = 0
    pv = {r for r in p.dst if r[0] == "v"}
    ps = {r for r in p.dst if r[0] == "s"}
    if p.valu:
        if c.mfma and pv & (c.src | c.srcc): n = max(n, 2)
        if (c.dpp or c.perml) and pv & c.src: n = max(n, 2)
        if c.rdlane and pv & c.src: n = max(n, 1)
        if p.trans and c.valu and not c.trans and pv & c.src: n = max(n, 1)
        if c.valu and ps & c.src: n = max(n, 4 if c.rdlane else 2)
        if c.vmem and ps & c.src: n = max(n, 5)
        if p.dot:
            only_c = c.op == p.op and not (pv & (c.src - c.srcc))
            if not only_c and pv & (c.src | c.dst | c.srcc): n = max(n, 3)
    if p.mfma:
        if c.mfma:
            if pv & c.src: n = max(n, 8)
            if pv & c.srcc and pv != c.srcc: n = max(n, 6)
            if pv & c.dst and pv != c.srcc: n = max(n, 8)
        elif (c.valu or c.vmem or c.ds) and pv & (c.src | c.dst): n = max(n, 8)
        if c.valu and p.srcc & c.dst: n = max(n, 3)
    if p.salu and ("s", "m0") in ps and c.ldsdma: n = max(n, 1)
    if p.stdata and p.stdata & c.dst: n = max(n, 2)
    return n


class Asm:
    def __init__(self):
        self.lines = []
        self.hist = []

    def raw(self, text):
        self.lines.append(text)

    def label(self, name):
        self.lines.append(name + ":")

    def __call__(self, text):
        for t in text.split("\n"):
            t = t.strip()
            if t:
                self._one(t)

    def _one(self, text):
        c = Ins(text)
        dist = 0
        pad = 0
        for p in reversed(self.hist):
            pad = max(pad, need(p, c) - dist)
            dist += p.states
            if dist >= 8:
                break
        if pad > 0:
            nop = Ins(f"s_nop {pad-1}")
            self.lines.append("    " + nop.text)
            self.hist.append(nop)
        self.lines.append("    " + text)
        self.hist.append(c)
        self.hist = self.hist[-10:]

    def settle(self):
        self("s_nop 7")

    def text(self):
        return "\n".join(self.lines) + "\n"
```

```python
import sys
from asm import Asm

NAME = "parallel_sum__gqa_block_cached__dense_activation_gelu__decode"

DEF = dict(D=5, R=32, NP=16, NV=32, ROT=16, NT="nt", DBG=0, BUD=200, WNT="nt")

WS_O1, WS_O2, WS_F, WS_ML, WS_Q, WS_DBG = 0, 512 << 10, 640 << 10, 1088 << 10, 1280 << 10, 2 << 20
WS_BYTES = 4 << 20
FSTRIDE = 224 * 64
SLOT = 1040
SPIN = 400000


def gen(**kw):
    P = dict(DEF); P.update(kw)
    D, R, NP, NV, ROT, NT, DBG, BUD, WNT = (P[k] for k in ("D", "R", "NP", "NV", "ROT", "NT", "DBG", "BUD", "WNT"))
    RING = R * SLOT
    L_Q = 4 * RING
    L_ML, L_FAC, L_FIN = L_Q + 1024, L_Q + 1024 + 128, L_Q + 1024 + 192
    LDS = max(L_FIN + 512, 84 << 10)
    a = Asm()
    hdr = open(f"cdna_kernels/{NAME}.s.ref").read().split("; Override")[0]
    a.raw(hdr.rstrip())
    a.raw(f"; @launch grid=(256,1,1) block=(320,1,1) lds={LDS}")
    a.raw('.amdgcn_target "amdgcn-amd-amdhsa--gfx950"')
    a.raw(f".text\n.globl {NAME}_kernel\n.p2align 8\n.type {NAME}_kernel,@function\n{NAME}_kernel:")

    pX, pK, pV, pWQ, pWO, pW1, pB1, pW2, pB2, pOUT, pDBG, pWS = 36, 38, 40, 42, 44, 48, 50, 52, 54, 56, 58, 60
    sG, sS, sKP, sVP, sMSK, sLB, sLO, sHI, sSPIN = 62, 63, 64, 65, 66, 68, 69, 70, 80
    sCLS = 72

    def srd(d, p, nbytes):
        a(f"s_mov_b32 s{d}, s{p}\ns_mov_b32 s{d+1}, s{p+1}\ns_mov_b32 s{d+2}, {nbytes}\ns_mov_b32 s{d+3}, 0x20000")

    def stamp(i):
        if DBG: a(f"s_memrealtime s[{84+2*i}:{85+2*i}]")

    def dump_stamps():
        if not DBG: return
        a("s_mov_b64 exec, -1\ns_waitcnt lgkmcnt(0)")
        a(f"s_lshl_b32 s81, s2, 3\ns_add_u32 s81, s81, s3\ns_lshl_b32 s81, s81, 6\ns_add_u32 s81, s81, {WS_DBG}")
        a("s_getreg_b32 s82, hwreg(HW_REG_XCC_ID)\nv_mov_b32 v1, 0\ns_mov_b64 exec, 1")
        for i in range(9):
            a(f"v_mov_b32 v2, s{84+2*i}\nbuffer_store_dword v2, v1, s[12:15], s81 offen offset:{4*i}")
        a("v_mov_b32 v2, s82\nbuffer_store_dword v2, v1, s[12:15], s81 offen offset:60\ns_waitcnt vmcnt(0)")

    def unpack(lo, hi, src):
        a(f"v_lshlrev_b32 v{lo}, 16, v{src}\nv_and_b32 v{hi}, 0xffff0000, v{src}")

    def rnd1(x):
        a(f"v_cvt_pk_bf16_f32 v{x}, v{x}, v{x}\nv_and_b32 v{x}, 0xffff0000, v{x}")

    def dpp(op, x, ctl):
        a(f"{op}_dpp v{x}, v{x}, v{x} {ctl} row_mask:0xf bank_mask:0xf")

    def rows_allreduce(op, x, t):
        for sw in ("v_permlane16_swap_b32", "v_permlane32_swap_b32"):
            a(f"v_mov_b32 v{t}, v{x}\n{sw} v{t}, v{x}\n{op} v{x}, v{t}, v{x}")

    def quad_scatter_sum(x):
        a(f"v_permlane32_swap_b32 v{x}, v{x+2}\nv_permlane32_swap_b32 v{x+1}, v{x+3}")
        a(f"v_add_f32 v{x}, v{x}, v{x+2}\nv_add_f32 v{x+1}, v{x+1}, v{x+3}")
        a(f"v_permlane16_swap_b32 v{x}, v{x+1}\nv_add_f32 v{x}, v{x}, v{x+1}")
        dpp("v_add_f32", x, "row_ror:4"); dpp("v_add_f32", x, "row_ror:8")

    def umax_tree(t, rs):
        rs = list(rs)
        a(f"v_max3_u32 v{t}, v{rs[0]}, v{rs[1]}, v{rs[2 % len(rs)]}")
        rs = rs[3:]
        while rs:
            a(f"v_max3_u32 v{t}, v{t}, v{rs[0]}, v{rs[1 % len(rs)]}"); rs = rs[2:]

    def spin_tail(label):
        a(f"s_sub_u32 s{sSPIN}, s{sSPIN}, 1\ns_cbranch_scc1 L_EXIT\ns_cbranch_vccnz {label}")

    stamp(0)
    a("s_load_dwordx16 s[36:51], s[0:1], 0\ns_load_dwordx8 s[52:59], s[0:1], 64\ns_load_dwordx2 s[60:61], s[0:1], 96")
    a("s_cmp_lt_u32 s2, 0x100\ns_cbranch_scc1 L_LIVE\ns_waitcnt lgkmcnt(0)\ns_endpgm")
    a.label("L_LIVE")
    a("v_lshrrev_b32 v1, 6, v0\nv_and_b32 v0, 63, v0")
    a(f"s_and_b32 s{sG}, s2, 7\ns_lshr_b32 s{sS}, s2, 3\nv_readfirstlane_b32 s3, v1")
    a(f"s_mov_b32 s{sSPIN}, {SPIN}\ns_mov_b32 s{sLO}, 0x05040100\ns_mov_b32 s{sHI}, 0x07060302")
    a("s_cmp_lt_u32 s3, 4\ns_cbranch_scc1 L_STREAM")

    hX, hW, hXP = 8, 32, 24
    a("v_lshrrev_b32 v1, 1, v0\nv_lshlrev_b32 v2, 5, v1\nv_lshlrev_b32 v3, 17, v1\nv_and_b32 v4, 1, v0\nv_lshl_add_u32 v3, v4, 4, v3")
    a(f"s_lshl_b32 s81, s{sG}, 10\ns_lshl_b32 s82, s{sS}, 5\ns_add_u32 s81, s81, s82")
    a("s_waitcnt lgkmcnt(0)")
    srd(4, pX, 1024); srd(16, pWQ, 4 << 20)
    a(f"buffer_load_dwordx4 v[{hXP}:{hXP+3}], v2, s[4:7], 0 offen\nbuffer_load_dwordx4 v[{hXP+4}:{hXP+7}], v2, s[4:7], 0 offen offset:16")
    for i in range(16):
        a(f"buffer_load_dwordx4 v[{hW+4*i}:{hW+4*i+3}], v3, s[16:19], s81 offen")
        if i < 15: a("s_addk_i32 s81, 0x2000")
    a("s_branch L_HELP")

    vKO, vVO, vRD, vMK, vMAX, vL, vS, vA, vQ, vACC, vD, vT0, vT, vV = 1, 2, 3, 8, 12, 13, 16, 48, 64, 64, 80, 84, 88, 120
    assert vV + 4 * NV <= 256
    a.label("L_STREAM")
    a("s_setprio 2")
    a(f"s_lshl_b32 s81, s{sG}, 24\ns_lshl_b32 s82, s{sS}, 19\ns_add_u32 s81, s81, s82\ns_lshl_b32 s82, s3, 10\ns_add_u32 s81, s81, s82")
    a(f"v_lshlrev_b32 v{vVO}, 4, v0\nv_lshrrev_b32 v7, 4, v0\nv_lshlrev_b32 v14, 6, v7\nv_xor_b32 v{vKO}, v14, v{vVO}")
    a(f"v_add_u32 v{vVO}, s81, v{vVO}\nv_add_u32 v{vKO}, s81, v{vKO}")
    a(f"s_mov_b32 s{sMSK}, 0x7ffff\ns_mul_i32 s{sKP}, s2, {ROT*1024}\ns_and_b32 s{sKP}, s{sKP}, s{sMSK}\ns_mov_b32 s{sVP}, s{sKP}")
    a(f"s_mul_i32 s{sLB}, s3, {RING}")
    a("s_waitcnt lgkmcnt(0)")
    srd(8, pV, 128 << 20); srd(4, pK, 128 << 20)

    seq = [("V", i) for i in range(NP)] + [("K", i) for i in range(128)] + [("V", i) for i in range(NP, 128)]
    pos = {x: n for n, x in enumerate(seq)}
    st = dict(rd=0, mf=0, sel=0, rnd=0, sm=0, perm=0, ap=0, pv=0, q=False, landed=-1, setup=0)
    vslot = lambda vi: vV + 4 * (vi % NV)

    def setup_pieces():
        def p0():
            a("v_and_b32 v14, 3, v0\nv_bfe_u32 v15, v0, 2, 2")
            a(f"v_mul_u32_u24 v{vRD}, {SLOT}, v14\nv_lshl_add_u32 v{vRD}, v15, 8, v{vRD}\nv_lshl_add_u32 v{vRD}, v7, 4, v{vRD}\nv_add_u32 v{vRD}, s{sLB}, v{vRD}")
            for ks in (3, 2, 1, 0):
                a(f"v_xor_b32 v{vT0}, {ks}, v15\nv_lshl_add_u32 v{vRD+ks}, v{vT0}, 6, v{vRD}")
        def p1():
            for i in range(4):
                m = 0x11111111 << i
                a(f"s_mov_b32 s{sCLS+2*i}, {hex(m)}\ns_mov_b32 s{sCLS+2*i+1}, {hex(m)}")
                a(f"v_cndmask_b32 v{vMK+i}, 0, -1, s[{sCLS+2*i}:{sCLS+2*i+1}]")
            a(f"v_mov_b32 v{vMAX}, 0xff800000\nv_mov_b32 v{vL}, 0")
        def p2():
            srd(12, pWS, WS_BYTES); srd(16, pWO, 4 << 20); srd(20, pOUT, 1024)
            a(f"v_lshlrev_b32 v15, 8, v15\nv_lshl_add_u32 v15, v7, 4, v15\nv_add_u32 v15, {L_Q}, v15")
        return [p0, p1, p2]
    setup = setup_pieces()

    def tile_dst(T):
        b = T // 2
        return (b % 4), vS + 8 * (b // 4) + 4 * (T % 2)

    def k_sel(T):
        t, dst = tile_dst(T)
        if t == 0: return 0
        for i in range(4):
            a(f"v_cndmask_b32 v{dst+i}, v{dst+i}, v{vD+i}, s[{sCLS+2*t}:{sCLS+2*t+1}]")
        return 16

    def k_mfma(T):
        t, dst = tile_dst(T)
        d = dst if t == 0 else vD
        a("s_waitcnt lgkmcnt(0)")
        for ks in range(4):
            c = "0" if ks == 0 else f"v[{d}:{d+3}]"
            a(f"v_mfma_f32_16x16x32_bf16 v[{d}:{d+3}], v[{vA+4*ks}:{vA+4*ks+3}], v[{vQ+4*ks}:{vQ+4*ks+3}], {c}")
        return 64

    def k_read(T):
        off = ((4 * T) % R) * SLOT
        for ks in range(4):
            a(f"ds_read_b128 v[{vA+4*ks}:{vA+4*ks+3}], v{vRD+ks} offset:{off}")
        return 24

    def k_round(j):
        x = vS + 4 * j
        a(f"v_cvt_pk_bf16_f32 v{vT0}, v{x}, v{x+1}\nv_cvt_pk_bf16_f32 v{vT0+1}, v{x+2}, v{x+3}")
        unpack(x, x + 1, vT0); unpack(x + 2, x + 3, vT0 + 1)
        for i in range(4): a(f"v_mul_f32 v{x+i}, 0x3db504f3, v{x+i}")
        a(f"v_cvt_pk_bf16_f32 v{vT0}, v{x}, v{x+1}\nv_cvt_pk_bf16_f32 v{vT0+1}, v{x+2}, v{x+3}")
        unpack(x, x + 1, vT0); unpack(x + 2, x + 3, vT0 + 1)
        a(f"v_max3_f32 v{vMAX}, v{vMAX}, v{x}, v{x+1}\nv_max3_f32 v{vMAX}, v{vMAX}, v{x+2}, v{x+3}")
        return 80

    def softmax(j):
        if j == 0:
            dpp("v_max_f32", vMAX, "quad_perm:[1,0,3,2]"); dpp("v_max_f32", vMAX, "quad_perm:[2,3,0,1]")
            rows_allreduce("v_max_f32", vMAX, vT0)
            for i in range(8): a(f"v_mov_b32 v{vACC+i}, 0")
            stamp(2)
            return 100
        if j <= 8:
            x = vS + 4 * (j - 1)
            for i in range(4): a(f"v_sub_f32 v{x+i}, v{x+i}, v{vMAX}")
            for i in range(4): a(f"v_mul_f32 v{x+i}, 0x3fb8aa3b, v{x+i}")
            for i in range(4): a(f"v_exp_f32 v{x+i}, v{x+i}")
            a(f"v_add_f32 v{vT0}, v{x}, v{x+1}\nv_add_f32 v{vT0+1}, v{x+2}, v{x+3}")
            dst = vS + 8 * ((j - 1) // 2) + 2 * ((j - 1) % 2)
            a(f"v_cvt_pk_bf16_f32 v{dst}, v{x}, v{x+1}\nv_cvt_pk_bf16_f32 v{dst+1}, v{x+2}, v{x+3}")
            a(f"v_add_f32 v{vL}, v{vL}, v{vT0}\nv_add_f32 v{vL}, v{vL}, v{vT0+1}")
            return 100
        dpp("v_add_f32", vL, "quad_perm:[1,0,3,2]"); dpp("v_add_f32", vL, "quad_perm:[2,3,0,1]")
        rows_allreduce("v_add_f32", vL, vT0)
        a(f"v_min_u32 v{vMAX}, -2, v{vMAX}\nv_min_u32 v{vL}, -2, v{vL}")
        a(f"s_lshl_b32 s81, s3, 5\ns_add_u32 s81, s81, {L_ML}\nv_lshl_add_u32 v{vT0}, v0, 1, s81")
        a(f"s_mov_b64 exec, 0x1111\nds_write_b64 v{vT0}, v[{vMAX}:{vMAX+1}]\ns_mov_b64 exec, -1")
        return 100

    def v_perm(pr):
        ra, rb, p = vslot(2 * pr), vslot(2 * pr + 1), pr % 4
        for q in range(4):
            a(f"v_perm_b32 v{vT+8*q+p}, v{rb+q}, v{ra+q}, s{sLO}\nv_perm_b32 v{vT+8*q+4+p}, v{rb+q}, v{ra+q}, s{sHI}")
        return 32

    def a_prep(b):
        t, src = b % 4, vS + 8 * (b // 4)
        for i in range(4):
            for p in range(4):
                a(f"v_and_b32_dpp v{vA+4*i+p}, v{src+p}, v{vMK+i} quad_perm:[{t},{t},{t},{t}] row_mask:0xf bank_mask:0xf")
        return 64

    def pv_mfma(h):
        jj = h % 2
        for i in range(4):
            j = 4 * jj + i
            d = f"v[{vACC+4*jj}:{vACC+4*jj+3}]"
            a(f"v_mfma_f32_16x16x32_bf16 {d}, v[{vA+4*i}:{vA+4*i+3}], v[{vT+4*j}:{vT+4*j+3}], {d}")
        return 64

    def work(budget):
        spent = 0
        landed = lambda x: pos[x] <= st["landed"]
        if st["setup"] < len(setup):
            setup[st["setup"]](); st["setup"] += 1
            return 60
        if st["sel"] < st["mf"]:
            spent += k_sel(st["sel"]) + 1; st["sel"] += 1
        if st["q"] and st["mf"] < st["rd"]:
            spent += k_mfma(st["mf"]); st["mf"] += 1
        if st["rd"] < 32 and st["rd"] == st["mf"] and landed(("K", 4 * st["rd"] + 3)):
            spent += k_read(st["rd"]); st["rd"] += 1
        while spent < budget:
            if st["rnd"] < 8 and st["sel"] >= 8 * (st["rnd"] // 2) + 7 + st["rnd"] % 2:
                spent += k_round(st["rnd"]); st["rnd"] += 1
            elif st["pv"] < 32 and st["ap"] > st["pv"] // 2 and st["perm"] >= 4 * (st["pv"] // 2 + 1):
                spent += pv_mfma(st["pv"]); st["pv"] += 1
            elif st["ap"] < 16 and st["pv"] == 2 * st["ap"] and st["sm"] >= 3 + 2 * (st["ap"] // 4):
                spent += a_prep(st["ap"]); st["ap"] += 1
            elif st["perm"] < 64 and st["pv"] >= 2 * (st["perm"] // 4) and landed(("V", 2 * st["perm"] + 1)):
                spent += v_perm(st["perm"]); st["perm"] += 1
            elif st["rnd"] == 8 and st["sm"] < 10:
                spent += softmax(st["sm"]); st["sm"] += 1
            else:
                break
        return spent

    forced = 0
    for n, (kind, i) in enumerate(seq):
        free = (lambda: i < R or (i - R) // 4 < st["mf"]) if kind == "K" else (lambda: i < NV or (i - NV) // 2 < st["perm"])
        while not free():
            assert work(1) > 0, (n, kind, i, st)
            forced += 1
        sp = sKP if kind == "K" else sVP
        if kind == "K":
            a(f"s_mov_b32 m0, s{sLB}" if i % R == 0 else f"s_addk_i32 m0, {SLOT}")
        if n >= D:
            a(f"s_waitcnt vmcnt({D-1})"); st["landed"] = n - D
        if kind == "K":
            a(f"buffer_load_dwordx4 v{vKO}, s[4:7], s{sp} offen {NT} lds")
        else:
            r = vslot(i)
            a(f"buffer_load_dwordx4 v[{r}:{r+3}], v{vVO}, s[8:11], s{sp} offen {NT}")
        a(f"s_addk_i32 s{sp}, 0x1000\ns_and_b32 s{sp}, s{sp}, s{sMSK}")
        if (kind, i) == ("K", R - 1):
            assert st["setup"] == len(setup)
            stamp(7)
            a("s_barrier")
            stamp(1)
            for ks in range(4):
                a(f"ds_read_b128 v[{vQ+4*ks}:{vQ+4*ks+3}], v15 offset:{64*ks}")
            st["q"] = True
        if n == len(seq) - 12:
            a(f"s_lshl_b32 s81, s{sG}, 19\ns_lshr_b32 s82, s{sS}, 2\ns_lshl_b32 s82, s82, 16\ns_add_u32 s81, s81, s82")
            a(f"s_lshl_b32 s82, s3, 14\ns_add_u32 s81, s81, s82\ns_and_b32 s82, s{sS}, 3\ns_lshl_b32 s82, s82, 8\ns_add_u32 s81, s81, s82")
            a(f"v_and_b32 v14, 15, v0\nv_lshlrev_b32 v14, 4, v14\nv_lshl_add_u32 v14, v7, 10, v14\nv_add_u32 v{vKO}, s81, v14")
            a(f"v_lshlrev_b32 v6, 4, v0\nv_add_u32 v3, s{sLB}, v6")
            a("v_and_b32 v14, 1, v0\nv_lshlrev_b32 v14, 10, v14\nv_lshrrev_b32 v15, 1, v0\nv_lshl_add_u32 v4, v15, 4, v14\ns_lshl_b32 s81, s3, 8\nv_add_u32 v4, s81, v4")
            a(f"s_lshl_b32 s81, s{sG}, 16\ns_lshl_b32 s82, s3, 14\ns_add_u32 s82, s82, s81\ns_lshl_b32 s83, s{sS}, 6\ns_add_u32 s82, s82, s83")
            a("v_lshrrev_b32 v14, 2, v0\nv_lshlrev_b32 v14, 11, v14\nv_and_b32 v15, 3, v0\nv_lshl_add_u32 v5, v15, 4, v14\nv_add_u32 v5, s82, v5")
            a(f"s_and_b32 s82, s{sS}, 28\ns_add_u32 s82, s82, s3\ns_lshl_b32 s82, s82, 11\ns_add_u32 s82, s82, s81\nv_add_u32 v6, s82, v6")
        elif n >= D - 1:
            work(BUD)
    vW = [vslot(128 + i) for i in range(4)]
    assert (128 + 3 - NV) // 2 < st["perm"]
    for i in range(4):
        a(f"s_mov_b32 s81, {4096*i}\nbuffer_load_dwordx4 v[{vW[i]}:{vW[i]+3}], v{vKO}, s[16:19], s81 offen {WNT}")
    a(f"s_lshl_b32 s81, s3, 4\ns_add_u32 s81, s81, {L_FAC}\nv_mov_b32 v7, s81")
    n = len(seq)
    while work(10**6): pass
    while st["landed"] < n - 1:
        st["landed"] += 1
        if seq[st["landed"]][1] % 2 == 1:
            a(f"s_waitcnt vmcnt({n - 1 - st['landed'] + 4})")
            if st["landed"] == n - 1: stamp(3)
            while work(10**6): pass
    assert st["pv"] == 32 and st["sm"] == 10

    a(f"ds_write_b128 v3, v[{vACC}:{vACC+3}]\nds_write_b128 v3, v[{vACC+4}:{vACC+7}] offset:1024")
    a("s_waitcnt lgkmcnt(0)\ns_barrier")
    a("s_mov_b32 exec_lo, -1\ns_mov_b32 exec_hi, 0")
    a(f"ds_read_b128 v[16:19], v7")
    for w in range(4):
        if w == 2: a(f"v_add_u32 v14, {2*RING}, v4")
        a(f"ds_read_b128 v[{20+4*w}:{23+4*w}], v{4 if w < 2 else 14} offset:{(w % 2)*RING}")
    a("s_waitcnt lgkmcnt(3)")
    for i in range(4): a(f"v_mul_f32 v{20+i}, v16, v{20+i}")
    for w in range(1, 4):
        a(f"s_waitcnt lgkmcnt({3-w})")
        for i in range(4): a(f"v_fmac_f32 v{20+i}, v{16+w}, v{20+4*w+i}")
    for i in range(4): a(f"v_min_u32 v{20+i}, -2, v{20+i}")
    a("buffer_store_dwordx4 v[20:23], v5, s[12:15], 0 offen sc1")
    a("s_mov_b64 exec, -1")
    stamp(4)
    a("buffer_load_dwordx4 v[24:27], v6, s[12:15], 0 offen sc1\nbuffer_load_dwordx4 v[28:31], v6, s[12:15], 0 offen offset:1024 sc1")
    a(f"v_lshlrev_b32 v3, 5, v0\ns_add_u32 s81, s{sLB}, 4096\nv_add_u32 v3, s81, v3")
    a("v_lshrrev_b32 v14, 3, v0\nv_lshlrev_b32 v4, 7, v14\nv_and_b32 v15, 3, v0\nv_lshl_add_u32 v4, v15, 5, v4\nv_bfe_u32 v14, v0, 2, 1\nv_lshl_add_u32 v4, v14, 4, v4")
    a(f"s_and_b32 s81, s{sS}, 3\ns_lshl_b32 s81, s81, 15\ns_lshl_b32 s82, s{sG}, 3\ns_lshr_b32 s83, s{sS}, 2\ns_add_u32 s82, s82, s83\ns_lshl_b32 s82, s82, 6\ns_add_u32 s81, s81, s82\ns_add_u32 s81, s81, {WS_O2}")
    a("v_lshrrev_b32 v14, 2, v0\nv_lshlrev_b32 v14, 12, v14\nv_lshl_add_u32 v14, v15, 4, v14\nv_add_u32 v1, s81, v14")
    a(f"v_add_u32 v2, {2*RING}, v4")
    a("s_waitcnt vmcnt(3)")
    for q in range(4):
        for p in range(2):
            a(f"v_perm_b32 v{vT+4*q+p}, v{vW[2*p+1]+q}, v{vW[2*p]+q}, s{sLO}\nv_perm_b32 v{vT+4*q+2+p}, v{vW[2*p+1]+q}, v{vW[2*p]+q}, s{sHI}")
    a("s_branch L_P1CHK")
    a.label("L_P1")
    a("buffer_load_dwordx4 v[24:27], v6, s[12:15], 0 offen sc1\nbuffer_load_dwordx4 v[28:31], v6, s[12:15], 0 offen offset:1024 sc1")
    a.label("L_P1CHK")
    a("s_waitcnt vmcnt(0)")
    umax_tree(14, range(24, 32))
    a("v_cmp_eq_u32 vcc, -1, v14")
    a("s_and_b64 exec, exec, vcc")
    spin_tail("L_P1")
    a("s_mov_b64 exec, -1")
    stamp(5)
    for i in range(4): a(f"v_add_f32 v{24+i}, v{24+i}, v{28+i}")
    quad_scatter_sum(24)
    for i in range(4):
        a(f"v_mov_b32_dpp v{28+i}, v24 quad_perm:[{i},{i},{i},{i}] row_mask:0xf bank_mask:0xf")
    a("v_cvt_pk_bf16_f32 v24, v28, v29\nv_cvt_pk_bf16_f32 v25, v30, v31")
    for j in range(8):
        a(f"v_mfma_f32_16x16x16_bf16 v[{32+4*j}:{35+4*j}], v[24:25], v[{vT+2*j}:{vT+2*j+1}], 0")
    a("s_mov_b64 exec, 0xffff")
    for j in range(0, 8, 2):
        a(f"ds_write2_b32 v3, v{32+4*j}, v{36+4*j} offset0:{j} offset1:{j+1}")
    a("s_waitcnt lgkmcnt(0)\ns_barrier")
    a("s_cmp_lg_u32 s3, 0\ns_cbranch_scc1 L_FINAL")
    a("s_mov_b32 exec_lo, -1\ns_mov_b32 exec_hi, 0")
    for w in range(4):
        a(f"ds_read_b128 v[{20+4*w}:{23+4*w}], v{4 if w < 2 else 2} offset:{(w % 2)*RING+4096}")
    for w in range(1, 4):
        a(f"s_waitcnt lgkmcnt({3-w})")
        for i in range(4): a(f"v_add_f32 v{20+i}, v{20+i}, v{20+4*w+i}")
    for i in range(4): a(f"v_min_u32 v{20+i}, -2, v{20+i}")
    a("buffer_store_dwordx4 v[20:23], v1, s[12:15], 0 offen sc1")
    stamp(6)
    a("s_branch L_EXIT")

    a.label("L_FINAL")
    a("s_cmp_lg_u32 s3, 1\ns_cbranch_scc1 L_EXIT\ns_cmp_ge_u32 s2, 32\ns_cbranch_scc1 L_EXIT")
    a("s_mov_b64 exec, -1")
    a(f"s_lshl_b32 s81, s2, 12\ns_add_u32 s81, s81, {WS_O2}\nv_lshlrev_b32 v6, 4, v0\nv_lshlrev_b32 v7, 3, v0\nv_add_u32 v7, {L_FIN}, v7")
    a("ds_read_b64 v[16:17], v7")
    a("s_lshr_b32 s82, s2, 1\ns_lshl_b32 s82, s82, 6\ns_and_b32 s83, s2, 1\ns_lshl_b32 s83, s83, 3\ns_add_u32 s82, s82, s83")
    a("v_lshrrev_b32 v14, 4, v0\nv_lshlrev_b32 v14, 1, v14\nv_lshl_add_u32 v5, v15, 4, v14")
    a.label("L_P2")
    for i in range(4):
        a(f"buffer_load_dwordx4 v[{24+4*i}:{27+4*i}], v6, s[12:15], s81 offen offset:{1024*i} sc1")
    a("s_waitcnt vmcnt(0)")
    umax_tree(14, range(24, 40))
    a("v_cmp_eq_u32 vcc, -1, v14")
    a("s_and_b64 exec, exec, vcc")
    spin_tail("L_P2")
    a("s_mov_b64 exec, -1")
    stamp(6)
    for i in range(8): a(f"v_add_f32 v{24+i}, v{24+i}, v{32+i}")
    for i in range(4): a(f"v_add_f32 v{24+i}, v{24+i}, v{28+i}")
    quad_scatter_sum(24)
    a("s_waitcnt lgkmcnt(0)")
    rnd1(24)
    a("v_add_f32 v24, v16, v24"); rnd1(24)
    a("v_add_f32 v24, v24, v17\nv_cvt_pk_bf16_f32 v24, v24, v24")
    a("s_mov_b32 exec_lo, 0x000f000f\ns_mov_b32 exec_hi, 0x000f000f")
    a("buffer_store_short v24, v5, s[20:23], s82 offen")
    if DBG: a("s_waitcnt vmcnt(0)")
    a.label("L_EXIT")
    stamp(8)
    dump_stamps()
    a("s_endpgm")

    a.label("L_HELP")
    srd(12, pWS, WS_BYTES); srd(20, pDBG, 256)
    a("v_mov_b32 v100, -1\nv_mov_b32 v101, -1\nv_mov_b32 v102, -1\nv_mov_b32 v103, -1\nv_lshlrev_b32 v5, 4, v0")
    a("s_mul_i32 s81, s2, 5120")
    for i in range(4):
        a(f"buffer_store_dwordx4 v[100:103], v5, s[12:15], s81 offen offset:{1024*i} sc1")
    a("s_addk_i32 s81, 0x1000\nbuffer_store_dwordx4 v[100:103], v5, s[12:15], s81 offen sc1")
    a(f"v_lshlrev_b32 v6, 3, v0\nv_add_u32 v6, {L_ML}, v6\ns_mov_b64 exec, 0xffff\nds_write_b64 v6, v[100:101]\ns_mov_b64 exec, -1")
    a("s_waitcnt vmcnt(21)")
    for i in range(8): unpack(hX + 2 * i, hX + 2 * i + 1, hXP + i)
    def sum16(dst, src):
        a(f"v_add_f32 v{dst}, v{src}, v{src+1}")
        for i in range(2, 16): a(f"v_add_f32 v{dst}, v{dst}, v{src+i}")
    def allsum32(x, t):
        for r in (2, 4, 8): dpp("v_add_f32", x, f"row_ror:{r}")
        rows_allreduce("v_add_f32", x, t)
    sum16(104, hX); allsum32(104, 105)
    a("v_mul_f32 v104, 0x3b000000, v104")
    for i in range(16): a(f"v_sub_f32 v{108+i}, v{hX+i}, v104")
    a("v_mul_f32 v106, v108, v108")
    for i in range(1, 16): a(f"v_fmac_f32 v106, v{108+i}, v{108+i}")
    allsum32(106, 105)
    a("v_mul_f32 v106, 0x3b000000, v106")
    rnd1(104); rnd1(106)
    a("v_add_f32 v106, 0x3727c5ac, v106"); rnd1(106)
    a("v_sqrt_f32 v106, v106"); rnd1(106)
    a("v_rcp_f32 v106, v106")
    for i in range(16): a(f"v_sub_f32 v{hX+i}, v{hX+i}, v104")
    for i in range(8): a(f"v_cvt_pk_bf16_f32 v{hXP+i}, v{hX+2*i}, v{hX+2*i+1}")
    for i in range(8): unpack(hX + 2 * i, hX + 2 * i + 1, hXP + i)
    for i in range(16): a(f"v_mul_f32 v{hX+i}, v{hX+i}, v106")
    for i in range(8): a(f"v_cvt_pk_bf16_f32 v{hXP+i}, v{hX+2*i}, v{hX+2*i+1}")

    def gemv(acc, w, npair, xsrc, tmp, waits=None):
        for p in range(npair):
            if waits: a(f"s_waitcnt vmcnt({waits(p)})")
            ra, rb = w + 8 * p, w + 8 * p + 4
            for q in range(4):
                a(f"v_perm_b32 v{tmp+2*q}, v{rb+q}, v{ra+q}, s{sLO}\nv_perm_b32 v{tmp+2*q+1}, v{rb+q}, v{ra+q}, s{sHI}")
            for j in range(8):
                a(f"v_dot2_f32_bf16 v{acc+j}, v{tmp+j}, {xsrc(p)}, {'0' if p == 0 else f'v{acc+j}'}")

    def scatter8(x):
        for j in range(4): a(f"v_permlane32_swap_b32 v{x+j}, v{x+4+j}")
        for j in range(4): a(f"v_add_f32 v{x+j}, v{x+j}, v{x+4+j}")
        for j in range(2): a(f"v_permlane16_swap_b32 v{x+j}, v{x+2+j}")
        for j in range(2): a(f"v_add_f32 v{x+j}, v{x+j}, v{x+2+j}")

    gemv(108, hW, 8, lambda p: f"v{hXP+p}", 116, lambda p: 5 + 14 - 2 * p)
    scatter8(108)
    for r in (2, 4, 8):
        dpp("v_add_f32", 108, f"row_ror:{r}"); dpp("v_add_f32", 109, f"row_ror:{r}")
    a("v_cvt_pk_bf16_f32 v108, v108, v109")
    a("v_lshrrev_b32 v7, 4, v0\nv_lshlrev_b32 v2, 2, v7\nv_lshl_add_u32 v3, v4, 4, v2")
    a(f"s_lshl_b32 s82, s{sG}, 10\ns_add_u32 s82, s82, {WS_Q}\ns_lshl_b32 s81, s{sS}, 5\ns_add_u32 s81, s81, s82")
    a("s_mov_b32 exec_lo, 0x00030003\ns_mov_b32 exec_hi, 0x00030003")
    a("buffer_store_dword v108, v3, s[12:15], s81 offen sc1")
    a("s_mov_b64 exec, 1\nv_mov_b32 v109, 1\nv_mov_b32 v110, s2")
    a("s_waitcnt vmcnt(0)")
    stamp(1)
    a("buffer_store_byte v109, v110, s[20:23], 0 offen sc1")
    a("s_mov_b64 exec, -1\nv_lshlrev_b32 v3, 2, v0\ns_mov_b32 s83, 0x01010101")
    a.label("L_H0")
    a("buffer_load_dword v109, v3, s[20:23], 0 offen sc1\ns_waitcnt vmcnt(0)\nv_cmp_ne_u32 vcc, s83, v109")
    spin_tail("L_H0")
    stamp(2)
    a(f"buffer_load_dwordx4 v[108:111], v5, s[12:15], s82 offen sc1\nv_add_u32 v3, {L_Q}, v5")
    a("s_waitcnt vmcnt(0)\nds_write_b128 v3, v[108:111]\ns_waitcnt lgkmcnt(0)")
    stamp(3)
    a("s_barrier")

    a(f"s_cmp_ge_u32 s{sS}, 28\ns_cbranch_scc1 L_NOFFN")
    srd(4, pW1, 512 * 3584); srd(8, pW2, 1792 * 1024); srd(16, pB1, 3584)
    a(f"s_mul_i32 s83, s{sG}, 28\ns_add_u32 s83, s83, s{sS}\ns_lshl_b32 s81, s83, 4\ns_lshl_b32 s82, s83, 13")
    a("v_mul_u32_u24 v3, 28672, v0")
    a("buffer_load_dword v107, v2, s[16:19], s81 offen")
    for e in range(8):
        a(f"buffer_load_dwordx4 v[{hW+4*e}:{hW+4*e+3}], v3, s[4:7], s81 offen")
        if e < 7: a("s_addk_i32 s81, 3584")
    for r in range(8):
        if r == 4: a("s_addk_i32 s82, 0x1000")
        a(f"buffer_load_dwordx4 v[{hW+32+4*r}:{hW+35+4*r}], v5, s[8:11], s82 offen offset:{1024*(r % 4)} {WNT}")
    a("v_cmp_eq_u32 vcc, 1, v4")
    for p in range(4): a(f"v_cndmask_b32 v{hX+p}, v{hXP+p}, v{hXP+4+p}, vcc")
    gemv(108, hW, 4, lambda p: f"v{hX+p}", 116, lambda p: 8 + 6 - 2 * p)
    scatter8(108)
    for r in (1, 2, 4, 8):
        dpp("v_add_f32", 108, f"row_ror:{r}"); dpp("v_add_f32", 109, f"row_ror:{r}")
    a("v_cvt_pk_bf16_f32 v110, v108, v109"); unpack(108, 109, 110); unpack(110, 111, 107)
    a("v_add_f32 v108, v108, v110\nv_add_f32 v109, v109, v111\nv_cvt_pk_bf16_f32 v110, v108, v109"); unpack(108, 109, 110)
    for x in (108, 109):
        t = x + 2
        a(f"v_mul_f32 v{t}, v{x}, v{x}\nv_mul_f32 v{t}, v{t}, v{x}\nv_mul_f32 v{t}, 0x3d372713, v{t}\nv_add_f32 v{t}, v{x}, v{t}")
        a(f"v_mul_f32 v{t}, 0xc0135761, v{t}\nv_exp_f32 v{t}, v{t}\nv_add_f32 v{t}, 1.0, v{t}\nv_rcp_f32 v{t}, v{t}\nv_mul_f32 v{x}, v{x}, v{t}")
    a("v_cvt_pk_bf16_f32 v108, v108, v109")
    for p in range(4): a(f"v_readlane_b32 s{sCLS+p}, v108, {16*p}")
    gemv(108, hW + 32, 4, lambda p: f"s{sCLS+p}", 116, lambda p: 6 - 2 * p)
    for j in range(8): a(f"v_min_u32 v{108+j}, -2, v{108+j}")
    a(f"v_lshrrev_b32 v3, 2, v0\nv_mul_u32_u24 v3, {2*FSTRIDE}, v3\nv_and_b32 v116, 3, v0\nv_lshl_add_u32 v3, v116, 4, v3")
    a(f"s_lshl_b32 s81, s83, 6\ns_add_u32 s81, s81, {WS_F}\ns_add_u32 s82, s81, {FSTRIDE}")
    a("buffer_store_dwordx4 v[108:111], v3, s[12:15], s81 offen sc1\nbuffer_store_dwordx4 v[112:115], v3, s[12:15], s82 offen sc1")
    a.settle()
    a.label("L_NOFFN")
    stamp(4)
    a("s_cmp_ge_u32 s2, 32\ns_cbranch_scc1 L_NOFIN")
    srd(4, pX, 1024); srd(8, pB2, 1024)
    a("s_lshr_b32 s82, s2, 1\ns_lshl_b32 s82, s82, 6\ns_and_b32 s83, s2, 1\ns_lshl_b32 s83, s83, 3\ns_add_u32 s82, s82, s83")
    a("v_and_b32 v3, 3, v0\nv_lshlrev_b32 v3, 4, v3\nv_lshl_add_u32 v3, v7, 1, v3")
    a("buffer_load_ushort v104, v3, s[4:7], s82 offen\nbuffer_load_ushort v106, v3, s[8:11], s82 offen")
    a(f"s_mul_i32 s83, s2, {FSTRIDE}\ns_add_u32 s83, s83, {WS_F}")
    a.label("L_H1")
    a("s_mov_b32 s81, s83")
    for i in range(14):
        if i and i % 4 == 0: a("s_addk_i32 s81, 0x1000")
        a(f"buffer_load_dwordx4 v[{hW+4*i}:{hW+4*i+3}], v5, s[12:15], s81 offen offset:{1024*(i % 4)} sc1")
    a("s_waitcnt vmcnt(0)")
    umax_tree(107, range(hW, hW + 56))
    a("v_cmp_eq_u32 vcc, -1, v107\ns_and_b64 exec, exec, vcc\ns_sleep 8")
    spin_tail("L_H1")
    a("s_mov_b64 exec, -1")
    for i in range(1, 14):
        for j in range(4): a(f"v_add_f32 v{hW+j}, v{hW+j}, v{hW+4*i+j}")
    quad_scatter_sum(hW)
    rnd1(hW)
    a(f"v_lshlrev_b32 v106, 16, v106\nv_lshlrev_b32 v104, 16, v104\nv_add_f32 v105, v{hW}, v106"); rnd1(105)
    a(f"v_lshlrev_b32 v3, 3, v0\nv_add_u32 v3, {L_FIN}, v3\nds_write_b64 v3, v[104:105]")
    a.settle()
    a.label("L_NOFIN")
    stamp(5)

    a(f"v_and_b32 v3, 15, v0\nv_lshlrev_b32 v6, 3, v3\nv_add_u32 v6, {L_ML}, v6")
    a.label("L_H2")
    a("s_sleep 4\nds_read_b64 v[8:9], v6\ns_waitcnt lgkmcnt(0)\nv_max_u32 v10, v8, v9\nv_cmp_eq_u32 vcc, -1, v10")
    spin_tail("L_H2")
    a("v_mov_b32 v10, v8")
    dpp("v_max_f32", 10, "row_ror:4"); dpp("v_max_f32", 10, "row_ror:8")
    a("v_sub_f32 v11, v8, v10\nv_mul_f32 v11, 0x3fb8aa3b, v11\nv_exp_f32 v11, v11\nv_mul_f32 v11, v11, v9")
    dpp("v_add_f32", 11, "row_ror:4"); dpp("v_add_f32", 11, "row_ror:8")
    a("v_min_u32 v10, -2, v10\nv_min_u32 v11, -2, v11\nv_lshlrev_b32 v6, 3, v0")
    a(f"s_lshl_b32 s82, s{sG}, 10\ns_add_u32 s82, s82, {WS_ML}\ns_lshl_b32 s81, s{sS}, 5\ns_add_u32 s81, s81, s82")
    a("s_mov_b64 exec, 15\nbuffer_store_dwordx2 v[10:11], v6, s[12:15], s81 offen sc1\ns_mov_b64 exec, -1")
    stamp(6)
    a.label("L_H3")
    a("s_sleep 8\nbuffer_load_dwordx2 v[12:13], v6, s[12:15], s82 offen sc1\nbuffer_load_dwordx2 v[14:15], v6, s[12:15], s82 offen offset:512 sc1")
    a("s_waitcnt vmcnt(0)")
    umax_tree(16, range(12, 16))
    a("v_cmp_eq_u32 vcc, -1, v16")
    spin_tail("L_H3")
    a("v_max_f32 v16, v12, v14")
    dpp("v_max_f32", 16, "row_ror:4"); dpp("v_max_f32", 16, "row_ror:8")
    rows_allreduce("v_max_f32", 16, 17)
    a("v_sub_f32 v12, v12, v16\nv_sub_f32 v14, v14, v16\nv_sub_f32 v8, v8, v16")
    a("v_mul_f32 v12, 0x3fb8aa3b, v12\nv_mul_f32 v14, 0x3fb8aa3b, v14\nv_mul_f32 v8, 0x3fb8aa3b, v8")
    a("v_exp_f32 v12, v12\nv_exp_f32 v14, v14\nv_exp_f32 v8, v8")
    a("v_mul_f32 v12, v12, v13\nv_fmac_f32 v12, v14, v15")
    dpp("v_add_f32", 12, "row_ror:4"); dpp("v_add_f32", 12, "row_ror:8")
    rows_allreduce("v_add_f32", 12, 17)
    a("v_rcp_f32 v12, v12\nv_mul_f32 v8, v8, v12")
    a(f"v_and_b32 v6, 3, v0\nv_lshlrev_b32 v6, 4, v6\nv_and_b32 v9, 12, v0\nv_add3_u32 v6, v6, v9, 0\nv_add_u32 v6, {L_FAC}, v6")
    a("s_mov_b64 exec, 0xffff\nds_write_b32 v6, v8\ns_waitcnt lgkmcnt(0)")
    stamp(7)
    a("s_branch L_EXIT")

    a.raw(f""".section .rodata,"a"
.p2align 6
.amdhsa_kernel {NAME}_kernel
  .amdhsa_next_free_vgpr 256
  .amdhsa_next_free_sgpr 102
  .amdhsa_accum_offset 256
  .amdhsa_group_segment_fixed_size 0
  .amdhsa_kernarg_size 104
  .amdhsa_user_sgpr_count 2
  .amdhsa_user_sgpr_kernarg_segment_ptr 1
  .amdhsa_system_sgpr_workgroup_id_x 1
  .amdhsa_float_denorm_mode_32 3
.end_amdhsa_kernel""")
    return a.text(), LDS, forced


if __name__ == "__main__":
    kw = {}
    out = f"cdna_kernels/{NAME}.s"
    for arg in sys.argv[1:]:
        k, v = arg.split("=")
        if k == "out": out = v
        else: kw[k] = int(v) if v.lstrip("-").isdigit() else v
    text, lds, forced = gen(**kw)
    open(out, "w").write(text)
    print("wrote", out, len(text), "bytes, lds", lds, "forced", forced)
```

```python
import sys
from asm import Asm

NAME = "parallel_sum__gqa_block_cached__dense_activation_gelu__decode"

DEF = dict(D=5, R=32, NP=16, NV=32, ROT=16, NT="nt", DBG=0, BUD=200, WNT="nt", QPUSH=0, NORND=0, MLPOS=48, QSLEEP=8, MAP="x")

WS_O1, WS_O2, WS_F, WS_ML, WS_E, WS_Q, WS_DBG = 0, 512 << 10, 640 << 10, 1088 << 10, 1120 << 10, 1280 << 10, 2 << 20
WS_BYTES = 4 << 20
FSTRIDE = 224 * 64
SLOT = 1040
SPIN = 400000


def gen(**kw):
    P = dict(DEF); P.update(kw)
    D, R, NP, NV, ROT, NT, DBG, BUD, WNT = (P[k] for k in ("D", "R", "NP", "NV", "ROT", "NT", "DBG", "BUD", "WNT"))
    RING = R * SLOT
    L_Q = 4 * RING
    L_ML, L_GO, L_FAC, L_FIN = L_Q + 1024, L_Q + 1024 + 128, L_Q + 1024 + 192, L_Q + 1024 + 256
    LDS = max(L_FIN + 512, 84 << 10)
    a = Asm()
    hdr = open(f"cdna_kernels/{NAME}.s.ref").read().split("; Override")[0]
    a.raw(hdr.rstrip())
    a.raw(f"; @launch grid=(256,1,1) block=(320,1,1) lds={LDS}")
    a.raw('.amdgcn_target "amdgcn-amd-amdhsa--gfx950"')
    a.raw(f".text\n.globl {NAME}_kernel\n.p2align 8\n.type {NAME}_kernel,@function\n{NAME}_kernel:")

    pX, pK, pV, pWQ, pWO, pW1, pB1, pW2, pB2, pOUT, pDBG, pWS = 36, 38, 40, 42, 44, 48, 50, 52, 54, 56, 58, 60
    sG, sS, sKP, sVP, sMSK, sLB, sLO, sHI, sSPIN = 62, 63, 64, 65, 66, 68, 69, 70, 80
    sCLS, sTAG, sE = 72, 24, 28

    def load_epoch():
        a(f"s_add_u32 s30, s{pWS}, {WS_E}\ns_addc_u32 s31, s{pWS+1}, 0\ns_load_dword s{sE}, s[30:31], 0")

    def make_tags(vm):
        a(f"s_add_u32 s{sE}, s{sE}, 0x9b35e301")
        for i in range(4): a(f"s_bfe_u32 s{sTAG+i}, s{sE}, {hex(0x80000 + 8*i)}")
        a(f"v_mov_b32 v{vm}, 0xffffff00")

    def tag4(x, vm):
        for i in range(4): a(f"v_and_or_b32 v{x+i}, v{x+i}, v{vm}, s{sTAG+i}")

    def untag(t, x, n):
        for i in range(n): a(f"v_xor_b32 v{x+i}, s{sTAG + i % 4}, v{x+i}")
        a(f"v_or3_b32 v{t}, v{x}, v{x+1}, v{x+2}")
        for i in range(3, n - 1, 2): a(f"v_or3_b32 v{t}, v{t}, v{x+i}, v{x+i+1}")
        a(f"v_or_b32 v{t}, v{t}, v{x+n-1}\nv_and_b32 v{t}, 0xff, v{t}\nv_cmp_ne_u32 vcc, 0, v{t}")

    def srd(d, p, nbytes):
        a(f"s_mov_b32 s{d}, s{p}\ns_mov_b32 s{d+1}, s{p+1}\ns_mov_b32 s{d+2}, {nbytes}\ns_mov_b32 s{d+3}, 0x20000")

    def stamp(i):
        if DBG: a(f"s_memrealtime s[{84+2*i}:{85+2*i}]")

    def dump_stamps():
        if not DBG: return
        a("s_mov_b64 exec, -1\ns_waitcnt lgkmcnt(0)")
        a(f"s_lshl_b32 s81, s2, 3\ns_add_u32 s81, s81, s3\ns_lshl_b32 s81, s81, 6\ns_add_u32 s81, s81, {WS_DBG}")
        a("s_getreg_b32 s82, hwreg(HW_REG_XCC_ID)\nv_mov_b32 v1, 0\ns_mov_b64 exec, 1")
        for i in range(9):
            a(f"v_mov_b32 v2, s{84+2*i}\nbuffer_store_dword v2, v1, s[12:15], s81 offen offset:{4*i}")
        a("v_mov_b32 v2, s82\nbuffer_store_dword v2, v1, s[12:15], s81 offen offset:60\ns_waitcnt vmcnt(0)")

    def unpack(lo, hi, src):
        a(f"v_lshlrev_b32 v{lo}, 16, v{src}\nv_and_b32 v{hi}, 0xffff0000, v{src}")

    def rnd1(x):
        a(f"v_cvt_pk_bf16_f32 v{x}, v{x}, v{x}\nv_and_b32 v{x}, 0xffff0000, v{x}")

    def dpp(op, x, ctl):
        a(f"{op}_dpp v{x}, v{x}, v{x} {ctl} row_mask:0xf bank_mask:0xf")

    def rows_allreduce(op, x, t):
        for sw in ("v_permlane16_swap_b32", "v_permlane32_swap_b32"):
            a(f"v_mov_b32 v{t}, v{x}\n{sw} v{t}, v{x}\n{op} v{x}, v{t}, v{x}")

    def quad_scatter_sum(x):
        a(f"v_permlane32_swap_b32 v{x}, v{x+2}\nv_permlane32_swap_b32 v{x+1}, v{x+3}")
        a(f"v_add_f32 v{x}, v{x}, v{x+2}\nv_add_f32 v{x+1}, v{x+1}, v{x+3}")
        a(f"v_permlane16_swap_b32 v{x}, v{x+1}\nv_add_f32 v{x}, v{x}, v{x+1}")
        dpp("v_add_f32", x, "row_ror:4"); dpp("v_add_f32", x, "row_ror:8")

    def umax_tree(t, rs):
        rs = list(rs)
        a(f"v_max3_u32 v{t}, v{rs[0]}, v{rs[1]}, v{rs[2 % len(rs)]}")
        rs = rs[3:]
        while rs:
            a(f"v_max3_u32 v{t}, v{t}, v{rs[0]}, v{rs[1 % len(rs)]}"); rs = rs[2:]

    def spin_tail(label):
        a(f"s_sub_u32 s{sSPIN}, s{sSPIN}, 1\ns_cbranch_scc1 L_EXIT\ns_cbranch_vccnz {label}")

    stamp(0)
    a("s_load_dwordx16 s[36:51], s[0:1], 0\ns_load_dwordx8 s[52:59], s[0:1], 64\ns_load_dwordx2 s[60:61], s[0:1], 96")
    a("s_cmp_lt_u32 s2, 0x100\ns_cbranch_scc1 L_LIVE\ns_waitcnt lgkmcnt(0)\ns_endpgm")
    a.label("L_LIVE")
    a("v_lshrrev_b32 v1, 6, v0\nv_and_b32 v0, 63, v0")
    if P["MAP"] == "x": a(f"s_and_b32 s{sG}, s2, 7\ns_lshr_b32 s{sS}, s2, 3")
    else: a(f"s_and_b32 s{sS}, s2, 31\ns_lshr_b32 s{sG}, s2, 5")
    a("v_readfirstlane_b32 s3, v1")
    a(f"s_mov_b32 s{sSPIN}, {SPIN}\ns_mov_b32 s{sLO}, 0x05040100\ns_mov_b32 s{sHI}, 0x07060302")
    a("s_cmp_lt_u32 s3, 4\ns_cbranch_scc1 L_STREAM")

    hX, hW, hXP = 8, 32, 24
    a("v_lshrrev_b32 v1, 1, v0\nv_lshlrev_b32 v2, 5, v1\nv_lshlrev_b32 v3, 17, v1\nv_and_b32 v4, 1, v0\nv_lshl_add_u32 v3, v4, 4, v3")
    a(f"s_lshl_b32 s81, s{sG}, 10\ns_lshl_b32 s82, s{sS}, 5\ns_add_u32 s81, s81, s82")
    a("s_waitcnt lgkmcnt(0)")
    srd(4, pX, 1024); srd(16, pWQ, 4 << 20)
    a(f"buffer_load_dwordx4 v[{hXP}:{hXP+3}], v2, s[4:7], 0 offen\nbuffer_load_dwordx4 v[{hXP+4}:{hXP+7}], v2, s[4:7], 0 offen offset:16")
    for i in range(16):
        a(f"buffer_load_dwordx4 v[{hW+4*i}:{hW+4*i+3}], v3, s[16:19], s81 offen")
        if i < 15: a("s_addk_i32 s81, 0x2000")
    a("s_branch L_HELP")

    vKO, vVO, vRD, vMK, vMAX, vL, vS, vA, vQ, vACC, vD, vT0, vT, vV = 1, 2, 3, 8, 12, 13, 16, 48, 64, 64, 80, 84, 88, 120
    assert vV + 4 * NV <= 256
    a.label("L_STREAM")
    a("s_setprio 2")
    a(f"s_lshl_b32 s81, s{sG}, 24\ns_lshl_b32 s82, s{sS}, 19\ns_add_u32 s81, s81, s82\ns_lshl_b32 s82, s3, 10\ns_add_u32 s81, s81, s82")
    a(f"v_lshlrev_b32 v{vVO}, 4, v0\nv_lshrrev_b32 v7, 4, v0\nv_lshlrev_b32 v14, 6, v7\nv_xor_b32 v{vKO}, v14, v{vVO}")
    a(f"v_add_u32 v{vVO}, s81, v{vVO}\nv_add_u32 v{vKO}, s81, v{vKO}")
    a(f"s_mov_b32 s{sMSK}, 0x7ffff\ns_mul_i32 s{sKP}, s2, {ROT*1024}\ns_and_b32 s{sKP}, s{sKP}, s{sMSK}\ns_mov_b32 s{sVP}, s{sKP}")
    a(f"s_mul_i32 s{sLB}, s3, {RING}")
    a("s_waitcnt lgkmcnt(0)")
    srd(8, pV, 128 << 20); srd(4, pK, 128 << 20)

    seq = [("V", i) for i in range(NP)] + [("K", i) for i in range(128)] + [("V", i) for i in range(NP, 128)]
    pos = {x: n for n, x in enumerate(seq)}
    st = dict(rd=0, mf=0, sel=0, rnd=0, sm=0, perm=0, ap=0, pv=0, q=False, landed=-1, setup=0)
    vslot = lambda vi: vV + 4 * (vi % NV)

    def setup_pieces():
        def p0():
            a("v_and_b32 v14, 3, v0\nv_bfe_u32 v15, v0, 2, 2")
            a(f"v_mul_u32_u24 v{vRD}, {SLOT}, v14\nv_lshl_add_u32 v{vRD}, v15, 8, v{vRD}\nv_lshl_add_u32 v{vRD}, v7, 4, v{vRD}\nv_add_u32 v{vRD}, s{sLB}, v{vRD}")
            for ks in (3, 2, 1, 0):
                a(f"v_xor_b32 v{vT0}, {ks}, v15\nv_lshl_add_u32 v{vRD+ks}, v{vT0}, 6, v{vRD}")
        def p1():
            for i in range(4):
                m = 0x11111111 << i
                a(f"s_mov_b32 s{sCLS+2*i}, {hex(m)}\ns_mov_b32 s{sCLS+2*i+1}, {hex(m)}")
                a(f"v_cndmask_b32 v{vMK+i}, 0, -1, s[{sCLS+2*i}:{sCLS+2*i+1}]")
            a(f"v_mov_b32 v{vMAX}, 0xff800000\nv_mov_b32 v{vL}, 0")
        def p2():
            srd(12, pWS, WS_BYTES); srd(16, pWO, 4 << 20); srd(20, pOUT, 1024)
            load_epoch()
            a(f"v_lshlrev_b32 v15, 8, v15\nv_lshl_add_u32 v15, v7, 4, v15\nv_add_u32 v15, {L_Q}, v15")
        return [p0, p1, p2]
    setup = setup_pieces()

    def tile_dst(T):
        b = T // 2
        return (b % 4), vS + 8 * (b // 4) + 4 * (T % 2)

    def k_sel(T):
        t, dst = tile_dst(T)
        if t == 0: return 0
        for i in range(4):
            a(f"v_cndmask_b32 v{dst+i}, v{dst+i}, v{vD+i}, s[{sCLS+2*t}:{sCLS+2*t+1}]")
        return 16

    def k_mfma(T):
        t, dst = tile_dst(T)
        d = dst if t == 0 else vD
        a("s_waitcnt lgkmcnt(0)")
        for ks in range(4):
            c = "0" if ks == 0 else f"v[{d}:{d+3}]"
            a(f"v_mfma_f32_16x16x32_bf16 v[{d}:{d+3}], v[{vA+4*ks}:{vA+4*ks+3}], v[{vQ+4*ks}:{vQ+4*ks+3}], {c}")
        return 64

    def k_read(T):
        off = ((4 * T) % R) * SLOT
        for ks in range(4):
            a(f"ds_read_b128 v[{vA+4*ks}:{vA+4*ks+3}], v{vRD+ks} offset:{off}")
        return 24

    def k_round(j):
        x = vS + 4 * j
        if P["NORND"]:
            for i in range(4): a(f"v_mul_f32 v{x+i}, 0x3db504f3, v{x+i}")
            a(f"v_max3_f32 v{vMAX}, v{vMAX}, v{x}, v{x+1}\nv_max3_f32 v{vMAX}, v{vMAX}, v{x+2}, v{x+3}")
            return 30
        a(f"v_cvt_pk_bf16_f32 v{vT0}, v{x}, v{x+1}\nv_cvt_pk_bf16_f32 v{vT0+1}, v{x+2}, v{x+3}")
        unpack(x, x + 1, vT0); unpack(x + 2, x + 3, vT0 + 1)
        for i in range(4): a(f"v_mul_f32 v{x+i}, 0x3db504f3, v{x+i}")
        a(f"v_cvt_pk_bf16_f32 v{vT0}, v{x}, v{x+1}\nv_cvt_pk_bf16_f32 v{vT0+1}, v{x+2}, v{x+3}")
        unpack(x, x + 1, vT0); unpack(x + 2, x + 3, vT0 + 1)
        a(f"v_max3_f32 v{vMAX}, v{vMAX}, v{x}, v{x+1}\nv_max3_f32 v{vMAX}, v{vMAX}, v{x+2}, v{x+3}")
        return 80

    def softmax(j):
        if j == 0:
            dpp("v_max_f32", vMAX, "quad_perm:[1,0,3,2]"); dpp("v_max_f32", vMAX, "quad_perm:[2,3,0,1]")
            rows_allreduce("v_max_f32", vMAX, vT0)
            for i in range(8): a(f"v_mov_b32 v{vACC+i}, 0")
            stamp(2)
            return 100
        if j <= 8:
            x = vS + 4 * (j - 1)
            for i in range(4): a(f"v_sub_f32 v{x+i}, v{x+i}, v{vMAX}")
            for i in range(4): a(f"v_mul_f32 v{x+i}, 0x3fb8aa3b, v{x+i}")
            for i in range(4): a(f"v_exp_f32 v{x+i}, v{x+i}")
            a(f"v_add_f32 v{vT0}, v{x}, v{x+1}\nv_add_f32 v{vT0+1}, v{x+2}, v{x+3}")
            dst = vS + 8 * ((j - 1) // 2) + 2 * ((j - 1) % 2)
            a(f"v_cvt_pk_bf16_f32 v{dst}, v{x}, v{x+1}\nv_cvt_pk_bf16_f32 v{dst+1}, v{x+2}, v{x+3}")
            a(f"v_add_f32 v{vL}, v{vL}, v{vT0}\nv_add_f32 v{vL}, v{vL}, v{vT0+1}")
            return 100
        dpp("v_add_f32", vL, "quad_perm:[1,0,3,2]"); dpp("v_add_f32", vL, "quad_perm:[2,3,0,1]")
        rows_allreduce("v_add_f32", vL, vT0)
        a(f"v_min_u32 v{vMAX}, -2, v{vMAX}\nv_min_u32 v{vL}, -2, v{vL}")
        a(f"s_lshl_b32 s81, s3, 5\ns_add_u32 s81, s81, {L_ML}\nv_lshl_add_u32 v{vT0}, v0, 1, s81")
        a(f"s_mov_b64 exec, 0x1111\nds_write_b64 v{vT0}, v[{vMAX}:{vMAX+1}]\ns_mov_b64 exec, -1")
        return 100

    def v_perm(pr):
        ra, rb, p = vslot(2 * pr), vslot(2 * pr + 1), pr % 4
        for q in range(4):
            a(f"v_perm_b32 v{vT+8*q+p}, v{rb+q}, v{ra+q}, s{sLO}\nv_perm_b32 v{vT+8*q+4+p}, v{rb+q}, v{ra+q}, s{sHI}")
        return 32

    def a_prep(b):
        t, src = b % 4, vS + 8 * (b // 4)
        for i in range(4):
            for p in range(4):
                a(f"v_and_b32_dpp v{vA+4*i+p}, v{src+p}, v{vMK+i} quad_perm:[{t},{t},{t},{t}] row_mask:0xf bank_mask:0xf")
        return 64

    def pv_mfma(h):
        jj = h % 2
        for i in range(4):
            j = 4 * jj + i
            d = f"v[{vACC+4*jj}:{vACC+4*jj+3}]"
            a(f"v_mfma_f32_16x16x32_bf16 {d}, v[{vA+4*i}:{vA+4*i+3}], v[{vT+4*j}:{vT+4*j+3}], {d}")
        return 64

    def work(budget):
        spent = 0
        landed = lambda x: pos[x] <= st["landed"]
        if st["setup"] < len(setup):
            setup[st["setup"]](); st["setup"] += 1
            return 60
        if st["sel"] < st["mf"]:
            spent += k_sel(st["sel"]) + 1; st["sel"] += 1
        if st["q"] and st["mf"] < st["rd"]:
            spent += k_mfma(st["mf"]); st["mf"] += 1
        if st["rd"] < 32 and st["rd"] == st["mf"] and landed(("K", 4 * st["rd"] + 3)):
            spent += k_read(st["rd"]); st["rd"] += 1
        while spent < budget:
            if st["rnd"] < 8 and st["sel"] >= 8 * (st["rnd"] // 2) + 7 + st["rnd"] % 2:
                spent += k_round(st["rnd"]); st["rnd"] += 1
            elif st["pv"] < 32 and st["ap"] > st["pv"] // 2 and st["perm"] >= 4 * (st["pv"] // 2 + 1):
                spent += pv_mfma(st["pv"]); st["pv"] += 1
            elif st["ap"] < 16 and st["pv"] == 2 * st["ap"] and st["sm"] >= 3 + 2 * (st["ap"] // 4):
                spent += a_prep(st["ap"]); st["ap"] += 1
            elif st["perm"] < 64 and st["pv"] >= 2 * (st["perm"] // 4) and landed(("V", 2 * st["perm"] + 1)):
                spent += v_perm(st["perm"]); st["perm"] += 1
            elif st["rnd"] == 8 and st["sm"] < 10:
                spent += softmax(st["sm"]); st["sm"] += 1
            else:
                break
        return spent

    forced = 0
    for n, (kind, i) in enumerate(seq):
        free = (lambda: i < R or (i - R) // 4 < st["mf"]) if kind == "K" else (lambda: i < NV or (i - NV) // 2 < st["perm"])
        while not free():
            assert work(1) > 0, (n, kind, i, st)
            forced += 1
        sp = sKP if kind == "K" else sVP
        if kind == "K":
            a(f"s_mov_b32 m0, s{sLB}" if i % R == 0 else f"s_addk_i32 m0, {SLOT}")
        if n >= D:
            a(f"s_waitcnt vmcnt({D-1})"); st["landed"] = n - D
        if kind == "K":
            a(f"buffer_load_dwordx4 v{vKO}, s[4:7], s{sp} offen {NT} lds")
        else:
            r = vslot(i)
            a(f"buffer_load_dwordx4 v[{r}:{r+3}], v{vVO}, s[8:11], s{sp} offen {NT}")
        a(f"s_addk_i32 s{sp}, 0x1000\ns_and_b32 s{sp}, s{sp}, s{sMSK}")
        if (kind, i) == ("K", R - 1):
            assert st["setup"] == len(setup)
            stamp(7)
            a("s_barrier")
            stamp(1)
            for ks in range(4):
                a(f"ds_read_b128 v[{vQ+4*ks}:{vQ+4*ks+3}], v15 offset:{64*ks}")
            st["q"] = True
        if n == len(seq) - P["MLPOS"]:
            a(f"v_mov_b32 v14, {L_GO}\ns_mov_b64 exec, 1\nds_write_b32 v14, v14\ns_mov_b64 exec, -1")
        if n == len(seq) - 12:
            assert st["sm"] == 10
            make_tags(vMAX)
            a(f"s_lshl_b32 s81, s{sG}, 19\ns_lshr_b32 s82, s{sS}, 2\ns_lshl_b32 s82, s82, 16\ns_add_u32 s81, s81, s82")
            a(f"s_lshl_b32 s82, s3, 14\ns_add_u32 s81, s81, s82\ns_and_b32 s82, s{sS}, 3\ns_lshl_b32 s82, s82, 8\ns_add_u32 s81, s81, s82")
            a(f"v_and_b32 v14, 15, v0\nv_lshlrev_b32 v14, 4, v14\nv_lshl_add_u32 v14, v7, 10, v14\nv_add_u32 v{vKO}, s81, v14")
            a(f"v_lshlrev_b32 v6, 4, v0\nv_add_u32 v3, s{sLB}, v6")
            a("v_and_b32 v14, 1, v0\nv_lshlrev_b32 v14, 10, v14\nv_lshrrev_b32 v15, 1, v0\nv_lshl_add_u32 v4, v15, 4, v14\ns_lshl_b32 s81, s3, 8\nv_add_u32 v4, s81, v4")
            a(f"s_lshl_b32 s81, s{sG}, 16\ns_lshl_b32 s82, s3, 14\ns_add_u32 s82, s82, s81\ns_lshl_b32 s83, s{sS}, 6\ns_add_u32 s82, s82, s83")
            a("v_lshrrev_b32 v14, 2, v0\nv_lshlrev_b32 v14, 11, v14\nv_and_b32 v15, 3, v0\nv_lshl_add_u32 v5, v15, 4, v14\nv_add_u32 v5, s82, v5")
            a(f"s_and_b32 s82, s{sS}, 28\ns_add_u32 s82, s82, s3\ns_lshl_b32 s82, s82, 11\ns_add_u32 s82, s82, s81\nv_add_u32 v6, s82, v6")
        elif n >= D - 1:
            work(BUD)
    vW = [vslot(128 + i) for i in range(4)]
    assert (128 + 3 - NV) // 2 < st["perm"]
    for i in range(4):
        a(f"s_mov_b32 s81, {4096*i}\nbuffer_load_dwordx4 v[{vW[i]}:{vW[i]+3}], v{vKO}, s[16:19], s81 offen {WNT}")
    a(f"s_lshl_b32 s81, s3, 4\ns_add_u32 s81, s81, {L_FAC}\nv_mov_b32 v7, s81")
    n = len(seq)
    while work(10**6): pass
    while st["landed"] < n - 1:
        st["landed"] += 1
        if seq[st["landed"]][1] % 2 == 1:
            a(f"s_waitcnt vmcnt({n - 1 - st['landed'] + 4})")
            if st["landed"] == n - 1: stamp(3)
            while work(10**6): pass
    assert st["pv"] == 32 and st["sm"] == 10

    a(f"ds_write_b128 v3, v[{vACC}:{vACC+3}]\nds_write_b128 v3, v[{vACC+4}:{vACC+7}] offset:1024")
    a("s_waitcnt lgkmcnt(0)\ns_barrier")
    a("s_mov_b32 exec_lo, -1\ns_mov_b32 exec_hi, 0")
    a(f"ds_read_b128 v[16:19], v7")
    for w in range(4):
        if w == 2: a(f"v_add_u32 v14, {2*RING}, v4")
        a(f"ds_read_b128 v[{20+4*w}:{23+4*w}], v{4 if w < 2 else 14} offset:{(w % 2)*RING}")
    a("s_waitcnt lgkmcnt(3)")
    for i in range(4): a(f"v_mul_f32 v{20+i}, v16, v{20+i}")
    for w in range(1, 4):
        a(f"s_waitcnt lgkmcnt({3-w})")
        for i in range(4): a(f"v_fmac_f32 v{20+i}, v{16+w}, v{20+4*w+i}")
    tag4(20, vMAX)
    a("buffer_store_dwordx4 v[20:23], v5, s[12:15], 0 offen sc1")
    a("s_mov_b64 exec, -1")
    stamp(4)
    a("buffer_load_dwordx4 v[24:27], v6, s[12:15], 0 offen sc1\nbuffer_load_dwordx4 v[28:31], v6, s[12:15], 0 offen offset:1024 sc1")
    a(f"v_lshlrev_b32 v3, 5, v0\ns_add_u32 s81, s{sLB}, 4096\nv_add_u32 v3, s81, v3")
    a("v_lshrrev_b32 v14, 3, v0\nv_lshlrev_b32 v4, 7, v14\nv_and_b32 v15, 3, v0\nv_lshl_add_u32 v4, v15, 5, v4\nv_bfe_u32 v14, v0, 2, 1\nv_lshl_add_u32 v4, v14, 4, v4")
    a(f"s_and_b32 s81, s{sS}, 3\ns_lshl_b32 s81, s81, 15\ns_lshl_b32 s82, s{sG}, 3\ns_lshr_b32 s83, s{sS}, 2\ns_add_u32 s82, s82, s83\ns_lshl_b32 s82, s82, 6\ns_add_u32 s81, s81, s82\ns_add_u32 s81, s81, {WS_O2}")
    a("v_lshrrev_b32 v14, 2, v0\nv_lshlrev_b32 v14, 12, v14\nv_lshl_add_u32 v14, v15, 4, v14\nv_add_u32 v1, s81, v14")
    a(f"v_add_u32 v2, {2*RING}, v4")
    a("s_waitcnt vmcnt(3)")
    for q in range(4):
        for p in range(2):
            a(f"v_perm_b32 v{vT+4*q+p}, v{vW[2*p+1]+q}, v{vW[2*p]+q}, s{sLO}\nv_perm_b32 v{vT+4*q+2+p}, v{vW[2*p+1]+q}, v{vW[2*p]+q}, s{sHI}")
    a("s_branch L_P1CHK")
    a.label("L_P1")
    a("buffer_load_dwordx4 v[24:27], v6, s[12:15], 0 offen sc1\nbuffer_load_dwordx4 v[28:31], v6, s[12:15], 0 offen offset:1024 sc1")
    a.label("L_P1CHK")
    a("s_waitcnt vmcnt(0)")
    untag(14, 24, 8)
    a("s_and_b64 exec, exec, vcc")
    spin_tail("L_P1")
    a("s_mov_b64 exec, -1")
    stamp(5)
    for i in range(4): a(f"v_add_f32 v{24+i}, v{24+i}, v{28+i}")
    quad_scatter_sum(24)
    for i in range(4):
        a(f"v_mov_b32_dpp v{28+i}, v24 quad_perm:[{i},{i},{i},{i}] row_mask:0xf bank_mask:0xf")
    a("v_cvt_pk_bf16_f32 v24, v28, v29\nv_cvt_pk_bf16_f32 v25, v30, v31")
    for j in range(8):
        a(f"v_mfma_f32_16x16x16_bf16 v[{32+4*j}:{35+4*j}], v[24:25], v[{vT+2*j}:{vT+2*j+1}], 0")
    a("s_mov_b64 exec, 0xffff")
    for j in range(0, 8, 2):
        a(f"ds_write2_b32 v3, v{32+4*j}, v{36+4*j} offset0:{j} offset1:{j+1}")
    a("s_waitcnt lgkmcnt(0)\ns_barrier")
    a("s_cmp_lg_u32 s3, 0\ns_cbranch_scc1 L_FINAL")
    a("s_mov_b32 exec_lo, -1\ns_mov_b32 exec_hi, 0")
    for w in range(4):
        a(f"ds_read_b128 v[{20+4*w}:{23+4*w}], v{4 if w < 2 else 2} offset:{(w % 2)*RING+4096}")
    for w in range(1, 4):
        a(f"s_waitcnt lgkmcnt({3-w})")
        for i in range(4): a(f"v_add_f32 v{20+i}, v{20+i}, v{20+4*w+i}")
    tag4(20, vMAX)
    a("buffer_store_dwordx4 v[20:23], v1, s[12:15], 0 offen sc1")
    stamp(6)
    a("s_branch L_EXIT")

    a.label("L_FINAL")
    a("s_cmp_lg_u32 s3, 1\ns_cbranch_scc1 L_EXIT\ns_cmp_ge_u32 s2, 32\ns_cbranch_scc1 L_EXIT")
    a("s_mov_b64 exec, -1")
    a(f"s_lshl_b32 s81, s2, 12\ns_add_u32 s81, s81, {WS_O2}\nv_lshlrev_b32 v6, 4, v0\nv_lshlrev_b32 v7, 3, v0\nv_add_u32 v7, {L_FIN}, v7")
    a("ds_read_b64 v[16:17], v7")
    a("s_lshr_b32 s82, s2, 1\ns_lshl_b32 s82, s82, 6\ns_and_b32 s83, s2, 1\ns_lshl_b32 s83, s83, 3\ns_add_u32 s82, s82, s83")
    a("v_lshrrev_b32 v14, 4, v0\nv_lshlrev_b32 v14, 1, v14\nv_lshl_add_u32 v5, v15, 4, v14")
    a.label("L_P2")
    for i in range(4):
        a(f"buffer_load_dwordx4 v[{24+4*i}:{27+4*i}], v6, s[12:15], s81 offen offset:{1024*i} sc1")
    a("s_waitcnt vmcnt(0)")
    untag(14, 24, 16)
    a("s_and_b64 exec, exec, vcc")
    spin_tail("L_P2")
    a("s_mov_b64 exec, -1")
    stamp(6)
    for i in range(8): a(f"v_add_f32 v{24+i}, v{24+i}, v{32+i}")
    for i in range(4): a(f"v_add_f32 v{24+i}, v{24+i}, v{28+i}")
    quad_scatter_sum(24)
    a("s_waitcnt lgkmcnt(0)")
    rnd1(24)
    a("v_add_f32 v24, v16, v24"); rnd1(24)
    a("v_add_f32 v24, v24, v17\nv_cvt_pk_bf16_f32 v24, v24, v24")
    a("s_mov_b32 exec_lo, 0x000f000f\ns_mov_b32 exec_hi, 0x000f000f")
    a("buffer_store_short v24, v5, s[20:23], s82 offen")
    a(f"s_cmp_lg_u32 s2, 0\ns_cbranch_scc1 L_NOE\ns_mov_b64 exec, 1\nv_mov_b32 v24, s{sE}\nv_mov_b32 v5, {WS_E}\nbuffer_store_dword v24, v5, s[12:15], 0 offen")
    a.label("L_NOE")
    if DBG: a("s_waitcnt vmcnt(0)")
    a.label("L_EXIT")
    stamp(8)
    dump_stamps()
    a("s_endpgm")

    a.label("L_HELP")
    srd(12, pWS, WS_BYTES)
    load_epoch()
    a("v_mov_b32 v100, -1\nv_mov_b32 v101, -1\nv_lshlrev_b32 v5, 4, v0\nv_lshrrev_b32 v7, 4, v0")
    a(f"v_lshlrev_b32 v6, 3, v0\nv_add_u32 v6, {L_ML}, v6\ns_mov_b64 exec, 0x1ffff\nds_write_b64 v6, v[100:101]\ns_mov_b64 exec, -1")
    a("s_waitcnt vmcnt(16)")
    for i in range(8): unpack(hX + 2 * i, hX + 2 * i + 1, hXP + i)
    def sum16(dst, src):
        a(f"v_add_f32 v{dst}, v{src}, v{src+1}")
        for i in range(2, 16): a(f"v_add_f32 v{dst}, v{dst}, v{src+i}")
    def allsum32(x, t):
        for r in (2, 4, 8): dpp("v_add_f32", x, f"row_ror:{r}")
        rows_allreduce("v_add_f32", x, t)
    sum16(104, hX); allsum32(104, 105)
    a("v_mul_f32 v104, 0x3b000000, v104")
    for i in range(16): a(f"v_sub_f32 v{108+i}, v{hX+i}, v104")
    a("v_mul_f32 v106, v108, v108")
    for i in range(1, 16): a(f"v_fmac_f32 v106, v{108+i}, v{108+i}")
    allsum32(106, 105)
    a("v_mul_f32 v106, 0x3b000000, v106")
    rnd1(104); rnd1(106)
    a("v_add_f32 v106, 0x3727c5ac, v106"); rnd1(106)
    a("v_sqrt_f32 v106, v106"); rnd1(106)
    a("v_rcp_f32 v106, v106")
    for i in range(16): a(f"v_sub_f32 v{hX+i}, v{hX+i}, v104")
    for i in range(8): a(f"v_cvt_pk_bf16_f32 v{hXP+i}, v{hX+2*i}, v{hX+2*i+1}")
    for i in range(8): unpack(hX + 2 * i, hX + 2 * i + 1, hXP + i)
    for i in range(16): a(f"v_mul_f32 v{hX+i}, v{hX+i}, v106")
    for i in range(8): a(f"v_cvt_pk_bf16_f32 v{hXP+i}, v{hX+2*i}, v{hX+2*i+1}")

    def gemv(acc, w, npair, xsrc, tmp, waits=None):
        for p in range(npair):
            if waits: a(f"s_waitcnt vmcnt({waits(p)})")
            ra, rb = w + 8 * p, w + 8 * p + 4
            for q in range(4):
                a(f"v_perm_b32 v{tmp+2*q}, v{rb+q}, v{ra+q}, s{sLO}\nv_perm_b32 v{tmp+2*q+1}, v{rb+q}, v{ra+q}, s{sHI}")
            for j in range(8):
                a(f"v_dot2_f32_bf16 v{acc+j}, v{tmp+j}, {xsrc(p)}, {'0' if p == 0 else f'v{acc+j}'}")

    def scatter8(x):
        for j in range(4): a(f"v_permlane32_swap_b32 v{x+j}, v{x+4+j}")
        for j in range(4): a(f"v_add_f32 v{x+j}, v{x+j}, v{x+4+j}")
        for j in range(2): a(f"v_permlane16_swap_b32 v{x+j}, v{x+2+j}")
        for j in range(2): a(f"v_add_f32 v{x+j}, v{x+j}, v{x+2+j}")

    a("s_waitcnt lgkmcnt(0)")
    make_tags(102)
    gemv(108, hW, 8, lambda p: f"v{hXP+p}", 116, lambda p: 14 - 2 * p)
    for j in range(4): a(f"v_permlane32_swap_b32 v{108+j}, v{112+j}")
    for j in range(4): a(f"v_add_f32 v{108+j}, v{108+j}, v{112+j}")
    for j in range(4): a(f"v_mov_b32 v{112+j}, v{108+j}")
    for j in range(4): a(f"v_permlane16_swap_b32 v{108+j}, v{112+j}")
    for j in range(4): a(f"v_add_f32 v{108+j}, v{108+j}, v{112+j}")
    for r in (2, 4, 8):
        for j in range(4): dpp("v_add_f32", 108 + j, f"row_ror:{r}")
    a("v_cvt_pk_bf16_f32 v112, v108, v109\nv_cvt_pk_bf16_f32 v113, v110, v111")
    unpack(108, 109, 112); unpack(110, 111, 113)
    tag4(108, 102)
    a("v_lshrrev_b32 v3, 5, v0\nv_lshlrev_b32 v3, 4, v3\nv_lshl_add_u32 v3, v4, 5, v3\nv_lshlrev_b32 v2, 2, v7")
    if P["QPUSH"]:
        a(f"s_lshl_b32 s82, s{sG}, 16\ns_add_u32 s82, s82, {WS_Q}\ns_lshl_b32 s81, s{sS}, 6\ns_add_u32 s81, s81, s82")
        a("v_bfe_u32 v112, v0, 1, 4\nv_lshl_add_u32 v3, v112, 11, v3")
        a("buffer_store_dwordx4 v[108:111], v3, s[12:15], s81 offen sc1\ns_add_u32 s81, s81, 0x8000")
        a("buffer_store_dwordx4 v[108:111], v3, s[12:15], s81 offen sc1")
        a(f"s_lshl_b32 s81, s{sS}, 11\ns_add_u32 s29, s82, s81")
    else:
        a(f"s_lshl_b32 s29, s{sG}, 11\ns_add_u32 s29, s29, {WS_Q}\ns_lshl_b32 s81, s{sS}, 6\ns_add_u32 s81, s81, s29")
        a("s_mov_b32 exec_lo, 3\ns_mov_b32 exec_hi, 3")
        a("buffer_store_dwordx4 v[108:111], v3, s[12:15], s81 offen sc1\ns_mov_b64 exec, -1")
    stamp(1)

    a(f"s_cmp_ge_u32 s{sS}, 28\ns_cbranch_scc1 L_NOFFN")
    srd(4, pW1, 512 * 3584); srd(8, pW2, 1792 * 1024); srd(16, pB1, 3584)
    a(f"s_mul_i32 s83, s{sG}, 28\ns_add_u32 s83, s83, s{sS}\ns_lshl_b32 s81, s83, 4\ns_lshl_b32 s82, s83, 13")
    a("v_mul_u32_u24 v3, 28672, v0")
    a("buffer_load_dword v107, v2, s[16:19], s81 offen")
    for e in range(8):
        a(f"buffer_load_dwordx4 v[{hW+4*e}:{hW+4*e+3}], v3, s[4:7], s81 offen")
        if e < 7: a("s_addk_i32 s81, 3584")
    for r in range(8):
        if r == 4: a("s_addk_i32 s82, 0x1000")
        a(f"buffer_load_dwordx4 v[{hW+32+4*r}:{hW+35+4*r}], v5, s[8:11], s82 offen offset:{1024*(r % 4)} {WNT}")
    a("v_cmp_eq_u32 vcc, 1, v4")
    for p in range(4): a(f"v_cndmask_b32 v{hX+p}, v{hXP+p}, v{hXP+4+p}, vcc")
    gemv(108, hW, 4, lambda p: f"v{hX+p}", 116, lambda p: 8 + 6 - 2 * p)
    scatter8(108)
    for r in (1, 2, 4, 8):
        dpp("v_add_f32", 108, f"row_ror:{r}"); dpp("v_add_f32", 109, f"row_ror:{r}")
    a("v_cvt_pk_bf16_f32 v110, v108, v109"); unpack(108, 109, 110); unpack(110, 111, 107)
    a("v_add_f32 v108, v108, v110\nv_add_f32 v109, v109, v111\nv_cvt_pk_bf16_f32 v110, v108, v109"); unpack(108, 109, 110)
    for x in (108, 109):
        t = x + 2
        a(f"v_mul_f32 v{t}, v{x}, v{x}\nv_mul_f32 v{t}, v{t}, v{x}\nv_mul_f32 v{t}, 0x3d372713, v{t}\nv_add_f32 v{t}, v{x}, v{t}")
        a(f"v_mul_f32 v{t}, 0xc0135761, v{t}\nv_exp_f32 v{t}, v{t}\nv_add_f32 v{t}, 1.0, v{t}\nv_rcp_f32 v{t}, v{t}\nv_mul_f32 v{x}, v{x}, v{t}")
    a("v_cvt_pk_bf16_f32 v108, v108, v109")
    for p in range(4): a(f"v_readlane_b32 s{sCLS+p}, v108, {16*p}")
    gemv(108, hW + 32, 4, lambda p: f"s{sCLS+p}", 116, lambda p: 6 - 2 * p)
    tag4(108, 102); tag4(112, 102)
    a(f"v_lshrrev_b32 v3, 2, v0\nv_mul_u32_u24 v3, {2*FSTRIDE}, v3\nv_and_b32 v116, 3, v0\nv_lshl_add_u32 v3, v116, 4, v3")
    a(f"s_lshl_b32 s81, s83, 6\ns_add_u32 s81, s81, {WS_F}\ns_add_u32 s82, s81, {FSTRIDE}")
    a("buffer_store_dwordx4 v[108:111], v3, s[12:15], s81 offen sc1\nbuffer_store_dwordx4 v[112:115], v3, s[12:15], s82 offen sc1")
    a.settle()
    a.label("L_NOFFN")
    stamp(4)
    a(f"v_lshlrev_b32 v3, 3, v0\nv_add_u32 v3, {L_Q}, v3\ns_branch L_H0A")
    a.label("L_H0")
    a(f"s_sleep {P['QSLEEP']}")
    a.label("L_H0A")
    a("buffer_load_dwordx4 v[108:111], v5, s[12:15], s29 offen sc1\nbuffer_load_dwordx4 v[112:115], v5, s[12:15], s29 offen offset:1024 sc1")
    a("s_waitcnt vmcnt(0)")
    untag(107, 108, 8)
    a("s_and_b64 exec, exec, vcc")
    spin_tail("L_H0")
    a("s_mov_b64 exec, -1")
    stamp(2)
    for i in range(4): a(f"v_perm_b32 v{116+i}, v{109+2*i}, v{108+2*i}, s{sHI}")
    a("ds_write_b64 v3, v[116:117]\nds_write_b64 v3, v[118:119] offset:512\ns_waitcnt lgkmcnt(0)")
    stamp(3)
    a("s_barrier")

    a(f"v_and_b32 v3, 15, v0\nv_lshlrev_b32 v6, 3, v3\nv_add_u32 v6, {L_ML}, v6")
    a.label("L_H2")
    a("s_sleep 4\nds_read_b64 v[8:9], v6\ns_waitcnt lgkmcnt(0)\nv_max_u32 v10, v8, v9\nv_cmp_eq_u32 vcc, -1, v10")
    spin_tail("L_H2")
    a("v_mov_b32 v10, v8")
    dpp("v_max_f32", 10, "row_ror:4"); dpp("v_max_f32", 10, "row_ror:8")
    a("v_sub_f32 v11, v8, v10\nv_mul_f32 v11, 0x3fb8aa3b, v11\nv_exp_f32 v11, v11\nv_mul_f32 v11, v11, v9")
    dpp("v_add_f32", 11, "row_ror:4"); dpp("v_add_f32", 11, "row_ror:8")
    a("v_mov_b32 v12, v10\nv_mov_b32 v13, v11\nv_mov_b32 v14, 0\nv_mov_b32 v15, 0")
    tag4(12, 102)
    a(f"s_lshl_b32 s29, s{sG}, 11\ns_add_u32 s29, s29, {WS_ML}\ns_lshl_b32 s81, s{sS}, 6\ns_add_u32 s81, s81, s29")
    a("s_mov_b64 exec, 15\nbuffer_store_dwordx4 v[12:15], v5, s[12:15], s81 offen sc1\ns_mov_b64 exec, -1")
    stamp(6)
    a("s_cmp_ge_u32 s2, 32\ns_cbranch_scc1 L_NOFIN")
    srd(4, pX, 1024); srd(8, pB2, 1024)
    a("s_lshr_b32 s82, s2, 1\ns_lshl_b32 s82, s82, 6\ns_and_b32 s83, s2, 1\ns_lshl_b32 s83, s83, 3\ns_add_u32 s82, s82, s83")
    a("v_and_b32 v3, 3, v0\nv_lshlrev_b32 v3, 4, v3\nv_lshl_add_u32 v3, v7, 1, v3")
    a("buffer_load_ushort v104, v3, s[4:7], s82 offen\nbuffer_load_ushort v106, v3, s[8:11], s82 offen")
    a(f"s_mul_i32 s83, s2, {FSTRIDE}\ns_add_u32 s83, s83, {WS_F}")
    a.label("L_H1")
    a("s_mov_b32 s81, s83")
    for i in range(14):
        if i and i % 4 == 0: a("s_addk_i32 s81, 0x1000")
        a(f"buffer_load_dwordx4 v[{hW+4*i}:{hW+4*i+3}], v5, s[12:15], s81 offen offset:{1024*(i % 4)} sc1")
    a("s_waitcnt vmcnt(0)")
    untag(107, hW, 56)
    a("s_and_b64 exec, exec, vcc")
    spin_tail("L_H1")
    a("s_mov_b64 exec, -1")
    for i in range(1, 14):
        for j in range(4): a(f"v_add_f32 v{hW+j}, v{hW+j}, v{hW+4*i+j}")
    quad_scatter_sum(hW)
    rnd1(hW)
    a(f"v_lshlrev_b32 v106, 16, v106\nv_lshlrev_b32 v104, 16, v104\nv_add_f32 v105, v{hW}, v106"); rnd1(105)
    a(f"v_lshlrev_b32 v3, 3, v0\nv_add_u32 v3, {L_FIN}, v3\nds_write_b64 v3, v[104:105]")
    a.settle()
    a.label("L_NOFIN")
    stamp(5)

    a(f"v_mov_b32 v6, {L_GO}")
    a.label("L_H4")
    a("s_sleep 4\nds_read_b32 v10, v6\ns_waitcnt lgkmcnt(0)\nv_cmp_eq_u32 vcc, -1, v10")
    spin_tail("L_H4")
    a.label("L_H3")
    a("buffer_load_dwordx4 v[12:15], v5, s[12:15], s29 offen sc1\nbuffer_load_dwordx4 v[16:19], v5, s[12:15], s29 offen offset:1024 sc1")
    a("s_waitcnt vmcnt(0)")
    untag(10, 12, 8)
    a("s_and_b64 exec, exec, vcc")
    spin_tail("L_H3")
    a("s_mov_b64 exec, -1\nv_mov_b32 v14, v16\nv_mov_b32 v15, v17")
    a("v_max_f32 v16, v12, v14")
    dpp("v_max_f32", 16, "row_ror:4"); dpp("v_max_f32", 16, "row_ror:8")
    rows_allreduce("v_max_f32", 16, 17)
    a("v_sub_f32 v12, v12, v16\nv_sub_f32 v14, v14, v16\nv_sub_f32 v8, v8, v16")
    a("v_mul_f32 v12, 0x3fb8aa3b, v12\nv_mul_f32 v14, 0x3fb8aa3b, v14\nv_mul_f32 v8, 0x3fb8aa3b, v8")
    a("v_exp_f32 v12, v12\nv_exp_f32 v14, v14\nv_exp_f32 v8, v8")
    a("v_mul_f32 v12, v12, v13\nv_fmac_f32 v12, v14, v15")
    dpp("v_add_f32", 12, "row_ror:4"); dpp("v_add_f32", 12, "row_ror:8")
    rows_allreduce("v_add_f32", 12, 17)
    a("v_rcp_f32 v12, v12\nv_mul_f32 v8, v8, v12")
    a(f"v_and_b32 v6, 3, v0\nv_lshlrev_b32 v6, 4, v6\nv_and_b32 v9, 12, v0\nv_add3_u32 v6, v6, v9, 0\nv_add_u32 v6, {L_FAC}, v6")
    a("s_mov_b64 exec, 0xffff\nds_write_b32 v6, v8\ns_waitcnt lgkmcnt(0)")
    stamp(7)
    a("s_branch L_EXIT")

    a.raw(f""".section .rodata,"a"
.p2align 6
.amdhsa_kernel {NAME}_kernel
  .amdhsa_next_free_vgpr 256
  .amdhsa_next_free_sgpr 102
  .amdhsa_accum_offset 256
  .amdhsa_group_segment_fixed_size 0
  .amdhsa_kernarg_size 104
  .amdhsa_user_sgpr_count 2
  .amdhsa_user_sgpr_kernarg_segment_ptr 1
  .amdhsa_system_sgpr_workgroup_id_x 1
  .amdhsa_float_denorm_mode_32 3
.end_amdhsa_kernel""")
    return a.text(), LDS, forced


if __name__ == "__main__":
    kw = {}
    out = f"cdna_kernels/{NAME}.s"
    for arg in sys.argv[1:]:
        k, v = arg.split("=")
        if k == "out": out = v
        else: kw[k] = int(v) if v.lstrip("-").isdigit() else v
    text, lds, forced = gen(**kw)
    open(out, "w").write(text)
    print("wrote", out, len(text), "bytes, lds", lds, "forced", forced)
```

```python
import sys
from asm import Asm

NAME = "parallel_sum__gqa_block_cached__dense_activation_gelu__decode"

DEF = dict(D=5, R=32, NP=0, NV=32, ROT=16, NT="nt", DBG=0, BUD=200, WNT="nt", NORND=0, MLPOS=48, QSLEEP=8, MAP="x", PWG=-1, PST=0, S1=0, S2=0, DE=0, DEN=0)

WS_O1, WS_O2, WS_F, WS_ML, WS_E, WS_Q, WS_H, WS_DBG = 0, 512 << 10, 640 << 10, 1088 << 10, 1120 << 10, 1280 << 10, 1344 << 10, 2 << 20
WS_BYTES = 4 << 20
FSTRIDE = 224 * 64
SLOT = 1040
SPIN = 400000


def gen(**kw):
    P = dict(DEF); P.update(kw)
    D, R, NP, NV, ROT, NT, DBG, BUD, WNT = (P[k] for k in ("D", "R", "NP", "NV", "ROT", "NT", "DBG", "BUD", "WNT"))
    RING = R * SLOT
    L_Q = 4 * RING
    L_ML, L_GO, L_FAC, L_FIN = L_Q + 1024, L_Q + 1024 + 128, L_Q + 1024 + 192, L_Q + 1024 + 256
    LDS = max(L_FIN + 512, 84 << 10)
    a = Asm()
    hdr = open(f"cdna_kernels/{NAME}.s.ref").read().split("; Override")[0]
    a.raw(hdr.rstrip())
    a.raw(f"; @launch grid=(256,1,1) block=(320,1,1) lds={LDS}")
    a.raw('.amdgcn_target "amdgcn-amd-amdhsa--gfx950"')
    a.raw(f".text\n.globl {NAME}_kernel\n.p2align 8\n.type {NAME}_kernel,@function\n{NAME}_kernel:")

    pX, pK, pV, pWQ, pWO, pW1, pB1, pW2, pB2, pOUT, pDBG, pWS = 36, 38, 40, 42, 44, 48, 50, 52, 54, 56, 58, 60
    sG, sS, sKP, sVP, sMSK, sLB, sLO, sHI, sSPIN = 62, 63, 64, 65, 66, 68, 69, 70, 80
    sCLS, sE = 72, 28

    def load_epoch():
        a(f"s_add_u32 s30, s{pWS}, {WS_E}\ns_addc_u32 s31, s{pWS+1}, 0\ns_load_dword s{sE}, s[30:31], 0")

    def make_tags(vt):
        a(f"s_add_u32 s{sE}, s{sE}, 0x9b35e3c1\nv_and_b32 v{vt+3}, 1, v0\nv_lshlrev_b32 v{vt+3}, 4, v{vt+3}\nv_lshrrev_b32 v{vt+3}, v{vt+3}, s{sE}")
        for i in range(4): a(f"v_bfe_u32 v{vt+i}, v{vt+3}, {4*i}, 4")

    def tag4(x, vt):
        for i in range(4): a(f"v_and_or_b32 v{x+i}, v{x+i}, -16, v{vt+i}")

    def untag(t, x, n, vt):
        for i in range(n): a(f"v_xor_b32 v{x+i}, v{vt + i % 4}, v{x+i}")
        a(f"v_or3_b32 v{t}, v{x}, v{x+1}, v{x+2}")
        for i in range(3, n - 1, 2): a(f"v_or3_b32 v{t}, v{t}, v{x+i}, v{x+i+1}")
        a(f"v_or_b32 v{t}, v{t}, v{x+n-1}\nv_and_b32 v{t}, 15, v{t}\nv_cmp_ne_u32 vcc, 0, v{t}\ns_wqm_b64 exec, vcc")

    def gather(label, dst, n, sbase, vaddr, t, vt, sleep=0):
        if sleep:
            a(f"s_branch {label}A")
            a.label(label)
            a(f"s_sleep {sleep}")
            a.label(label + "A")
        else:
            a.label(label)
        for i in range(n):
            if i % 4 == 0 and i: a(f"s_add_u32 s81, s{sbase}, {1024*i}")
            a(f"buffer_load_dwordx4 v[{dst+4*i}:{dst+4*i+3}], v{vaddr}, s[12:15], s{81 if i >= 4 else sbase} offen offset:{1024*(i % 4)} sc1")
        a("s_waitcnt vmcnt(0)")
        untag(t, dst, 4 * n, vt)
        spin_tail(label)
        a("s_mov_b64 exec, -1")

    def srd(d, p, nbytes):
        a(f"s_mov_b32 s{d}, s{p}\ns_mov_b32 s{d+1}, s{p+1}\ns_mov_b32 s{d+2}, {nbytes}\ns_mov_b32 s{d+3}, 0x20000")

    def stamp(i):
        if DBG: a(f"s_memrealtime s[{84+2*i}:{85+2*i}]")

    def dump_stamps():
        if not DBG: return
        if P["PWG"] >= 0:
            a(f"s_waitcnt lgkmcnt(0)\ns_cmp_lg_u32 s2, {P['PWG']}\ns_cbranch_scc1 L_PROBE_END\ns_cmp_lg_u32 s3, 1\ns_cbranch_scc1 L_PROBE_END")
            a(f"s_add_u32 s81, s{84+2*P['PST']}, 10000")
            a.label("L_PROBE")
            a("s_memrealtime s[82:83]\ns_waitcnt lgkmcnt(0)\ns_sub_u32 s82, s82, s81\ns_cmp_lt_i32 s82, 0\ns_cbranch_scc1 L_PROBE")
            a.label("L_PROBE_END")
            return
        a("s_mov_b64 exec, -1\ns_waitcnt lgkmcnt(0)")
        a(f"s_lshl_b32 s81, s2, 3\ns_add_u32 s81, s81, s3\ns_lshl_b32 s81, s81, 6\ns_add_u32 s81, s81, {WS_DBG}")
        a("s_getreg_b32 s82, hwreg(HW_REG_XCC_ID)\nv_mov_b32 v1, 0\ns_mov_b64 exec, 1")
        for i in range(9):
            a(f"v_mov_b32 v2, s{84+2*i}\nbuffer_store_dword v2, v1, s[12:15], s81 offen offset:{4*i}")
        a("v_mov_b32 v2, s82\nbuffer_store_dword v2, v1, s[12:15], s81 offen offset:60\ns_waitcnt vmcnt(0)")

    def unpack(lo, hi, src):
        a(f"v_lshlrev_b32 v{lo}, 16, v{src}\nv_and_b32 v{hi}, 0xffff0000, v{src}")

    def rnd1(x):
        a(f"v_cvt_pk_bf16_f32 v{x}, v{x}, v{x}\nv_and_b32 v{x}, 0xffff0000, v{x}")

    def dpp(op, x, ctl):
        a(f"{op}_dpp v{x}, v{x}, v{x} {ctl} row_mask:0xf bank_mask:0xf")

    def rows_allreduce(op, x, t):
        for sw in ("v_permlane16_swap_b32", "v_permlane32_swap_b32"):
            a(f"v_mov_b32 v{t}, v{x}\n{sw} v{t}, v{x}\n{op} v{x}, v{t}, v{x}")

    def quad_scatter_sum(x):
        a(f"v_permlane32_swap_b32 v{x}, v{x+2}\nv_permlane32_swap_b32 v{x+1}, v{x+3}")
        a(f"v_add_f32 v{x}, v{x}, v{x+2}\nv_add_f32 v{x+1}, v{x+1}, v{x+3}")
        a(f"v_permlane16_swap_b32 v{x}, v{x+1}\nv_add_f32 v{x}, v{x}, v{x+1}")
        dpp("v_add_f32", x, "row_ror:4"); dpp("v_add_f32", x, "row_ror:8")

    def umax_tree(t, rs):
        rs = list(rs)
        a(f"v_max3_u32 v{t}, v{rs[0]}, v{rs[1]}, v{rs[2 % len(rs)]}")
        rs = rs[3:]
        while rs:
            a(f"v_max3_u32 v{t}, v{t}, v{rs[0]}, v{rs[1 % len(rs)]}"); rs = rs[2:]

    def spin_tail(label):
        a(f"s_sub_u32 s{sSPIN}, s{sSPIN}, 1\ns_cbranch_scc1 L_EXIT\ns_cbranch_vccnz {label}")

    stamp(0)
    a("s_load_dwordx16 s[36:51], s[0:1], 0\ns_load_dwordx8 s[52:59], s[0:1], 64\ns_load_dwordx2 s[60:61], s[0:1], 96")
    a("s_cmp_lt_u32 s2, 0x100\ns_cbranch_scc1 L_LIVE\ns_waitcnt lgkmcnt(0)\ns_endpgm")
    a.label("L_LIVE")
    a("v_lshrrev_b32 v1, 6, v0\nv_and_b32 v0, 63, v0")
    if P["MAP"] == "x": a(f"s_and_b32 s{sG}, s2, 7\ns_lshr_b32 s{sS}, s2, 3")
    else: a(f"s_and_b32 s{sS}, s2, 31\ns_lshr_b32 s{sG}, s2, 5")
    a("v_readfirstlane_b32 s3, v1")
    a(f"s_mov_b32 s{sSPIN}, {SPIN}\ns_mov_b32 s{sLO}, 0x05040100\ns_mov_b32 s{sHI}, 0x07060302")
    a("s_cmp_lt_u32 s3, 4\ns_cbranch_scc1 L_STREAM")

    hXA, hXQ, hXF, hW, hW1, hW2, hT, hA, hU = 8, 12, 20, 32, 96, 128, 24, 160, 168
    a("v_lshlrev_b32 v5, 4, v0\nv_lshrrev_b32 v1, 3, v0\nv_lshlrev_b32 v2, 5, v1\nv_and_b32 v4, 7, v0\nv_lshlrev_b32 v4, 4, v4\nv_lshl_add_u32 v3, v1, 17, v4")
    a(f"s_lshr_b32 s83, s{sS}, 3\ns_lshl_b32 s81, s83, 20\ns_lshl_b32 s82, s{sG}, 10\ns_add_u32 s81, s81, s82\ns_and_b32 s82, s{sS}, 7\ns_lshl_b32 s82, s82, 7\ns_add_u32 s81, s81, s82\ns_lshl_b32 s82, s83, 8")
    a("s_waitcnt lgkmcnt(0)")
    srd(4, pX, 1024); srd(16, pWQ, 4 << 20)
    a(f"buffer_load_dwordx4 v[{hXA}:{hXA+3}], v5, s[4:7], 0 offen")
    a(f"buffer_load_dwordx4 v[{hXQ}:{hXQ+3}], v2, s[4:7], s82 offen\nbuffer_load_dwordx4 v[{hXQ+4}:{hXQ+7}], v2, s[4:7], s82 offen offset:16")
    a(f"s_and_b32 s82, s2, 7\ns_lshl_b32 s82, s82, 7\nv_lshlrev_b32 v2, 4, v1\nbuffer_load_dwordx4 v[{hXF}:{hXF+3}], v2, s[4:7], s82 offen")
    for i in range(16):
        a(f"buffer_load_dwordx4 v[{hW+4*i}:{hW+4*i+3}], v3, s[16:19], s81 offen {WNT}")
        if i < 15: a("s_addk_i32 s81, 0x2000")
    a("s_branch L_HELP")

    vKO, vVO, vRD, vMK, vMAX, vL, vS, vA, vQ, vACC, vD, vT0, vT, vV = 1, 2, 3, 8, 12, 13, 16, 48, 64, 64, 80, 84, 88, 120
    assert vV + 4 * NV <= 256
    a.label("L_STREAM")
    a("s_setprio 2")
    a(f"s_lshl_b32 s81, s{sG}, 24\ns_lshl_b32 s82, s{sS}, 19\ns_add_u32 s81, s81, s82\ns_lshl_b32 s82, s3, 10\ns_add_u32 s81, s81, s82")
    a(f"v_lshlrev_b32 v{vVO}, 4, v0\nv_lshrrev_b32 v7, 4, v0\nv_lshlrev_b32 v14, 6, v7\nv_xor_b32 v{vKO}, v14, v{vVO}")
    a(f"v_add_u32 v{vVO}, s81, v{vVO}\nv_add_u32 v{vKO}, s81, v{vKO}")
    a(f"s_mov_b32 s{sMSK}, 0x7ffff\ns_mul_i32 s{sKP}, s2, {ROT*1024}\ns_and_b32 s{sKP}, s{sKP}, s{sMSK}\ns_mov_b32 s{sVP}, s{sKP}")
    a(f"s_mul_i32 s{sLB}, s3, {RING}")
    a("s_waitcnt lgkmcnt(0)")
    srd(8, pV, 128 << 20); srd(4, pK, 128 << 20)

    seq = [("V", i) for i in range(NP)] + [("K", i) for i in range(128)] + [("V", i) for i in range(NP, 128)]
    pos = {x: n for n, x in enumerate(seq)}
    st = dict(rd=0, mf=0, sel=0, rnd=0, sm=0, perm=0, ap=0, pv=0, q=False, landed=-1, setup=0)
    vslot = lambda vi: vV + 4 * (vi % NV)

    def setup_pieces():
        def p0():
            a("v_and_b32 v14, 3, v0\nv_bfe_u32 v15, v0, 2, 2")
            a(f"v_mul_u32_u24 v{vRD}, {SLOT}, v14\nv_lshl_add_u32 v{vRD}, v15, 8, v{vRD}\nv_lshl_add_u32 v{vRD}, v7, 4, v{vRD}\nv_add_u32 v{vRD}, s{sLB}, v{vRD}")
            for ks in (3, 2, 1, 0):
                a(f"v_xor_b32 v{vT0}, {ks}, v15\nv_lshl_add_u32 v{vRD+ks}, v{vT0}, 6, v{vRD}")
        def p1():
            for i in range(4):
                m = 0x11111111 << i
                a(f"s_mov_b32 s{sCLS+2*i}, {hex(m)}\ns_mov_b32 s{sCLS+2*i+1}, {hex(m)}")
                a(f"v_cndmask_b32 v{vMK+i}, 0, -1, s[{sCLS+2*i}:{sCLS+2*i+1}]")
            a(f"v_mov_b32 v{vMAX}, 0xff800000\nv_mov_b32 v{vL}, 0")
        def p2():
            srd(12, pWS, WS_BYTES); srd(16, pWO, 4 << 20); srd(20, pOUT, 1024)
            load_epoch()
            a(f"v_lshlrev_b32 v15, 8, v15\nv_lshl_add_u32 v15, v7, 4, v15\nv_add_u32 v15, {L_Q}, v15")
        return [p0, p1, p2]
    setup = setup_pieces()

    def tile_dst(T):
        b = T // 2
        return (b % 4), vS + 8 * (b // 4) + 4 * (T % 2)

    def k_sel(T):
        t, dst = tile_dst(T)
        if t == 0: return 0
        for i in range(4):
            a(f"v_cndmask_b32 v{dst+i}, v{dst+i}, v{vD+i}, s[{sCLS+2*t}:{sCLS+2*t+1}]")
        return 16

    def k_mfma(T):
        t, dst = tile_dst(T)
        d = dst if t == 0 else vD
        a("s_waitcnt lgkmcnt(0)")
        for ks in range(4):
            c = "0" if ks == 0 else f"v[{d}:{d+3}]"
            a(f"v_mfma_f32_16x16x32_bf16 v[{d}:{d+3}], v[{vA+4*ks}:{vA+4*ks+3}], v[{vQ+4*ks}:{vQ+4*ks+3}], {c}")
        return 64

    def k_read(T):
        off = ((4 * T) % R) * SLOT
        for ks in range(4):
            a(f"ds_read_b128 v[{vA+4*ks}:{vA+4*ks+3}], v{vRD+ks} offset:{off}")
        return 24

    def k_round(j):
        x = vS + 4 * j
        if P["NORND"]:
            for i in range(4): a(f"v_mul_f32 v{x+i}, 0x3db504f3, v{x+i}")
            a(f"v_max3_f32 v{vMAX}, v{vMAX}, v{x}, v{x+1}\nv_max3_f32 v{vMAX}, v{vMAX}, v{x+2}, v{x+3}")
            return 30
        a(f"v_cvt_pk_bf16_f32 v{vT0}, v{x}, v{x+1}\nv_cvt_pk_bf16_f32 v{vT0+1}, v{x+2}, v{x+3}")
        unpack(x, x + 1, vT0); unpack(x + 2, x + 3, vT0 + 1)
        for i in range(4): a(f"v_mul_f32 v{x+i}, 0x3db504f3, v{x+i}")
        a(f"v_cvt_pk_bf16_f32 v{vT0}, v{x}, v{x+1}\nv_cvt_pk_bf16_f32 v{vT0+1}, v{x+2}, v{x+3}")
        unpack(x, x + 1, vT0); unpack(x + 2, x + 3, vT0 + 1)
        a(f"v_max3_f32 v{vMAX}, v{vMAX}, v{x}, v{x+1}\nv_max3_f32 v{vMAX}, v{vMAX}, v{x+2}, v{x+3}")
        return 80

    def softmax(j):
        if j == 0:
            dpp("v_max_f32", vMAX, "quad_perm:[1,0,3,2]"); dpp("v_max_f32", vMAX, "quad_perm:[2,3,0,1]")
            rows_allreduce("v_max_f32", vMAX, vT0)
            for i in range(8): a(f"v_mov_b32 v{vACC+i}, 0")
            stamp(2)
            return 100
        if j <= 8:
            x = vS + 4 * (j - 1)
            for i in range(4): a(f"v_sub_f32 v{x+i}, v{x+i}, v{vMAX}")
            for i in range(4): a(f"v_mul_f32 v{x+i}, 0x3fb8aa3b, v{x+i}")
            for i in range(4): a(f"v_exp_f32 v{x+i}, v{x+i}")
            a(f"v_add_f32 v{vT0}, v{x}, v{x+1}\nv_add_f32 v{vT0+1}, v{x+2}, v{x+3}")
            dst = vS + 8 * ((j - 1) // 2) + 2 * ((j - 1) % 2)
            a(f"v_cvt_pk_bf16_f32 v{dst}, v{x}, v{x+1}\nv_cvt_pk_bf16_f32 v{dst+1}, v{x+2}, v{x+3}")
            a(f"v_add_f32 v{vL}, v{vL}, v{vT0}\nv_add_f32 v{vL}, v{vL}, v{vT0+1}")
            return 100
        dpp("v_add_f32", vL, "quad_perm:[1,0,3,2]"); dpp("v_add_f32", vL, "quad_perm:[2,3,0,1]")
        rows_allreduce("v_add_f32", vL, vT0)
        a(f"v_min_u32 v{vMAX}, -2, v{vMAX}\nv_min_u32 v{vL}, -2, v{vL}")
        a(f"s_lshl_b32 s81, s3, 5\ns_add_u32 s81, s81, {L_ML}\nv_lshl_add_u32 v{vT0}, v0, 1, s81")
        a(f"s_mov_b64 exec, 0x1111\nds_write_b64 v{vT0}, v[{vMAX}:{vMAX+1}]\ns_mov_b64 exec, -1")
        return 100

    def v_perm(pr):
        ra, rb, p = vslot(2 * pr), vslot(2 * pr + 1), pr % 4
        for q in range(4):
            a(f"v_perm_b32 v{vT+8*q+p}, v{rb+q}, v{ra+q}, s{sLO}\nv_perm_b32 v{vT+8*q+4+p}, v{rb+q}, v{ra+q}, s{sHI}")
        return 32

    def a_prep(b):
        t, src = b % 4, vS + 8 * (b // 4)
        for i in range(4):
            for p in range(4):
                a(f"v_and_b32_dpp v{vA+4*i+p}, v{src+p}, v{vMK+i} quad_perm:[{t},{t},{t},{t}] row_mask:0xf bank_mask:0xf")
        return 64

    def pv_mfma(h):
        jj = h % 2
        for i in range(4):
            j = 4 * jj + i
            d = f"v[{vACC+4*jj}:{vACC+4*jj+3}]"
            a(f"v_mfma_f32_16x16x32_bf16 {d}, v[{vA+4*i}:{vA+4*i+3}], v[{vT+4*j}:{vT+4*j+3}], {d}")
        return 64

    def work(budget):
        spent = 0
        landed = lambda x: pos[x] <= st["landed"]
        if st["setup"] < len(setup):
            setup[st["setup"]](); st["setup"] += 1
            return 60
        if st["sel"] < st["mf"]:
            spent += k_sel(st["sel"]) + 1; st["sel"] += 1
        if st["q"] and st["mf"] < st["rd"]:
            spent += k_mfma(st["mf"]); st["mf"] += 1
        if st["rd"] < 32 and st["rd"] == st["mf"] and landed(("K", 4 * st["rd"] + 3)):
            spent += k_read(st["rd"]); st["rd"] += 1
        while spent < budget:
            if st["rnd"] < 8 and st["sel"] >= 8 * (st["rnd"] // 2) + 7 + st["rnd"] % 2:
                spent += k_round(st["rnd"]); st["rnd"] += 1
            elif st["pv"] < 32 and st["ap"] > st["pv"] // 2 and st["perm"] >= 4 * (st["pv"] // 2 + 1):
                spent += pv_mfma(st["pv"]); st["pv"] += 1
            elif st["ap"] < 16 and st["pv"] == 2 * st["ap"] and st["sm"] >= 3 + 2 * (st["ap"] // 4):
                spent += a_prep(st["ap"]); st["ap"] += 1
            elif st["perm"] < 64 and st["pv"] >= 2 * (st["perm"] // 4) and landed(("V", 2 * st["perm"] + 1)):
                spent += v_perm(st["perm"]); st["perm"] += 1
            elif st["rnd"] == 8 and st["sm"] < 10:
                spent += softmax(st["sm"]); st["sm"] += 1
            else:
                break
        return spent

    forced = 0
    for n, (kind, i) in enumerate(seq):
        free = (lambda: i < R or (i - R) // 4 < st["mf"]) if kind == "K" else (lambda: i < NV or (i - NV) // 2 < st["perm"])
        while not free():
            assert work(1) > 0, (n, kind, i, st)
            forced += 1
        sp = sKP if kind == "K" else sVP
        if kind == "K":
            a(f"s_mov_b32 m0, s{sLB}" if i % R == 0 else f"s_addk_i32 m0, {SLOT}")
        Dn = P["DE"] if n >= len(seq) - P["DEN"] else D
        if n - Dn > st["landed"]:
            a(f"s_waitcnt vmcnt({Dn-1})"); st["landed"] = n - Dn
        if kind == "K":
            a(f"buffer_load_dwordx4 v{vKO}, s[4:7], s{sp} offen {NT} lds")
        else:
            r = vslot(i)
            a(f"buffer_load_dwordx4 v[{r}:{r+3}], v{vVO}, s[8:11], s{sp} offen {NT}")
        a(f"s_addk_i32 s{sp}, 0x1000\ns_and_b32 s{sp}, s{sp}, s{sMSK}")
        if (kind, i) == ("K", R - 1):
            assert st["setup"] == len(setup)
            stamp(7)
            a("s_barrier")
            stamp(1)
            for ks in range(4):
                a(f"ds_read_b128 v[{vQ+4*ks}:{vQ+4*ks+3}], v15 offset:{64*ks}")
            st["q"] = True
        if n == len(seq) - P["MLPOS"]:
            a(f"v_mov_b32 v14, {L_GO}\ns_mov_b64 exec, 1\nds_write_b32 v14, v14\ns_mov_b64 exec, -1")
        if n == len(seq) - 12:
            assert st["sm"] == 10
            make_tags(vD)
            a(f"s_lshl_b32 s81, s{sG}, 19\ns_lshr_b32 s82, s{sS}, 2\ns_lshl_b32 s82, s82, 16\ns_add_u32 s81, s81, s82")
            a(f"s_lshl_b32 s82, s3, 14\ns_add_u32 s81, s81, s82\ns_and_b32 s82, s{sS}, 3\ns_lshl_b32 s82, s82, 8\ns_add_u32 s81, s81, s82")
            a(f"v_and_b32 v14, 15, v0\nv_lshlrev_b32 v14, 4, v14\nv_lshl_add_u32 v14, v7, 10, v14\nv_add_u32 v{vKO}, s81, v14")
            a(f"v_lshlrev_b32 v6, 4, v0\nv_add_u32 v3, s{sLB}, v6")
            a("v_and_b32 v14, 1, v0\nv_lshlrev_b32 v14, 10, v14\nv_lshrrev_b32 v15, 1, v0\nv_lshl_add_u32 v4, v15, 4, v14\ns_lshl_b32 s81, s3, 8\nv_add_u32 v4, s81, v4")
            a(f"s_lshl_b32 s81, s{sG}, 16\ns_lshl_b32 s82, s3, 14\ns_add_u32 s82, s82, s81\ns_lshl_b32 s83, s{sS}, 6\ns_add_u32 s82, s82, s83")
            a("v_lshrrev_b32 v14, 2, v0\nv_lshlrev_b32 v14, 11, v14\nv_and_b32 v15, 3, v0\nv_lshl_add_u32 v5, v15, 4, v14\nv_add_u32 v5, s82, v5")
            a(f"s_and_b32 s82, s{sS}, 28\ns_add_u32 s82, s82, s3\ns_lshl_b32 s82, s82, 11\ns_add_u32 s82, s82, s81\nv_add_u32 v6, s82, v6")
        elif n >= D - 1:
            work(BUD)
    vW = [vslot(128 + i) for i in range(4)]
    assert (128 + 3 - NV) // 2 < st["perm"]
    for i in range(4):
        a(f"s_mov_b32 s81, {4096*i}\nbuffer_load_dwordx4 v[{vW[i]}:{vW[i]+3}], v{vKO}, s[16:19], s81 offen {WNT}")
    a(f"s_lshl_b32 s81, s3, 4\ns_add_u32 s81, s81, {L_FAC}\nv_mov_b32 v7, s81")
    n = len(seq)
    while work(10**6): pass
    while st["landed"] < n - 1:
        st["landed"] += 1
        if seq[st["landed"]][1] % 2 == 1:
            a(f"s_waitcnt vmcnt({n - 1 - st['landed'] + 4})")
            if st["landed"] == n - 1: stamp(3)
            while work(10**6): pass
    assert st["pv"] == 32 and st["sm"] == 10

    a(f"ds_write_b128 v3, v[{vACC}:{vACC+3}]\nds_write_b128 v3, v[{vACC+4}:{vACC+7}] offset:1024")
    a("s_waitcnt lgkmcnt(0)\ns_barrier")
    a("s_mov_b32 exec_lo, -1\ns_mov_b32 exec_hi, 0")
    a(f"ds_read_b128 v[16:19], v7")
    for w in range(4):
        if w == 2: a(f"v_add_u32 v14, {2*RING}, v4")
        a(f"ds_read_b128 v[{20+4*w}:{23+4*w}], v{4 if w < 2 else 14} offset:{(w % 2)*RING}")
    a("s_waitcnt lgkmcnt(3)")
    for i in range(4): a(f"v_mul_f32 v{20+i}, v16, v{20+i}")
    for w in range(1, 4):
        a(f"s_waitcnt lgkmcnt({3-w})")
        for i in range(4): a(f"v_fmac_f32 v{20+i}, v{16+w}, v{20+4*w+i}")
    tag4(20, vD)
    a("buffer_store_dwordx4 v[20:23], v5, s[12:15], 0 offen sc1")
    a("s_mov_b64 exec, -1")
    stamp(4)
    a("buffer_load_dwordx4 v[24:27], v6, s[12:15], 0 offen sc1\nbuffer_load_dwordx4 v[28:31], v6, s[12:15], 0 offen offset:1024 sc1")
    a(f"v_lshlrev_b32 v3, 5, v0\ns_add_u32 s81, s{sLB}, 4096\nv_add_u32 v3, s81, v3")
    a("v_lshrrev_b32 v14, 3, v0\nv_lshlrev_b32 v4, 7, v14\nv_and_b32 v15, 3, v0\nv_lshl_add_u32 v4, v15, 5, v4\nv_bfe_u32 v14, v0, 2, 1\nv_lshl_add_u32 v4, v14, 4, v4")
    a(f"s_and_b32 s81, s{sS}, 3\ns_lshl_b32 s81, s81, 15\ns_lshl_b32 s82, s{sG}, 3\ns_lshr_b32 s83, s{sS}, 2\ns_add_u32 s82, s82, s83\ns_lshl_b32 s82, s82, 6\ns_add_u32 s81, s81, s82\ns_add_u32 s81, s81, {WS_O2}")
    a("v_lshrrev_b32 v14, 2, v0\nv_lshlrev_b32 v14, 12, v14\nv_lshl_add_u32 v14, v15, 4, v14\nv_add_u32 v1, s81, v14")
    a(f"v_add_u32 v2, {2*RING}, v4")
    a("s_waitcnt vmcnt(3)")
    for q in range(4):
        for p in range(2):
            a(f"v_perm_b32 v{vT+4*q+p}, v{vW[2*p+1]+q}, v{vW[2*p]+q}, s{sLO}\nv_perm_b32 v{vT+4*q+2+p}, v{vW[2*p+1]+q}, v{vW[2*p]+q}, s{sHI}")
    a("s_branch L_P1CHK")
    a.label("L_P1")
    if P["S1"]: a(f"s_sleep {P['S1']}")
    a("buffer_load_dwordx4 v[24:27], v6, s[12:15], 0 offen sc1\nbuffer_load_dwordx4 v[28:31], v6, s[12:15], 0 offen offset:1024 sc1")
    a.label("L_P1CHK")
    a("s_waitcnt vmcnt(0)")
    untag(14, 24, 8, vD)
    spin_tail("L_P1")
    a("s_mov_b64 exec, -1")
    stamp(5)
    for i in range(4): a(f"v_add_f32 v{24+i}, v{24+i}, v{28+i}")
    quad_scatter_sum(24)
    for i in range(4):
        a(f"v_mov_b32_dpp v{28+i}, v24 quad_perm:[{i},{i},{i},{i}] row_mask:0xf bank_mask:0xf")
    a("v_cvt_pk_bf16_f32 v24, v28, v29\nv_cvt_pk_bf16_f32 v25, v30, v31")
    for j in range(8):
        a(f"v_mfma_f32_16x16x16_bf16 v[{32+4*j}:{35+4*j}], v[24:25], v[{vT+2*j}:{vT+2*j+1}], 0")
    a("s_mov_b64 exec, 0xffff")
    for j in range(0, 8, 2):
        a(f"ds_write2_b32 v3, v{32+4*j}, v{36+4*j} offset0:{j} offset1:{j+1}")
    a("s_waitcnt lgkmcnt(0)\ns_barrier")
    a("s_cmp_lg_u32 s3, 0\ns_cbranch_scc1 L_FINAL")
    a("s_mov_b32 exec_lo, -1\ns_mov_b32 exec_hi, 0")
    for w in range(4):
        a(f"ds_read_b128 v[{20+4*w}:{23+4*w}], v{4 if w < 2 else 2} offset:{(w % 2)*RING+4096}")
    for w in range(1, 4):
        a(f"s_waitcnt lgkmcnt({3-w})")
        for i in range(4): a(f"v_add_f32 v{20+i}, v{20+i}, v{20+4*w+i}")
    tag4(20, vD)
    a("buffer_store_dwordx4 v[20:23], v1, s[12:15], 0 offen sc1")
    stamp(6)
    a("s_branch L_EXIT")

    a.label("L_FINAL")
    a("s_cmp_lg_u32 s3, 1\ns_cbranch_scc1 L_EXIT\ns_cmp_lt_u32 s2, 224\ns_cbranch_scc1 L_EXIT")
    a("s_mov_b64 exec, -1")
    a(f"s_lshl_b32 s29, s2, 12\ns_add_u32 s29, s29, {WS_O2 - 224*4096 & 0xffffffff}\nv_lshlrev_b32 v6, 4, v0\nv_lshlrev_b32 v7, 3, v0\nv_add_u32 v7, {L_FIN}, v7")
    a("ds_read_b64 v[16:17], v7")
    a("s_bfe_u32 s82, s2, 0x40001\ns_lshl_b32 s82, s82, 6\ns_and_b32 s83, s2, 1\ns_lshl_b32 s83, s83, 3\ns_add_u32 s82, s82, s83")
    a("v_lshrrev_b32 v14, 4, v0\nv_lshlrev_b32 v14, 1, v14\nv_lshl_add_u32 v5, v15, 4, v14")
    gather("L_P2", 24, 4, 29, 6, 14, vD, P["S2"])
    stamp(6)
    for i in range(8): a(f"v_add_f32 v{24+i}, v{24+i}, v{32+i}")
    for i in range(4): a(f"v_add_f32 v{24+i}, v{24+i}, v{28+i}")
    quad_scatter_sum(24)
    a("s_waitcnt lgkmcnt(0)")
    rnd1(24)
    a("v_add_f32 v24, v16, v24"); rnd1(24)
    a("v_add_f32 v24, v24, v17\nv_cvt_pk_bf16_f32 v24, v24, v24")
    a("s_mov_b32 exec_lo, 0x000f000f\ns_mov_b32 exec_hi, 0x000f000f")
    a("buffer_store_short v24, v5, s[20:23], s82 offen")
    a(f"s_cmp_lg_u32 s2, 224\ns_cbranch_scc1 L_NOE\ns_mov_b64 exec, 1\nv_mov_b32 v24, s{sE}\nv_mov_b32 v5, {WS_E}\nbuffer_store_dword v24, v5, s[12:15], 0 offen")
    a.label("L_NOE")
    if DBG: a("s_waitcnt vmcnt(0)")
    a.label("L_EXIT")
    stamp(8)
    dump_stamps()
    a("s_endpgm")

    a.label("L_HELP")
    srd(12, pWS, WS_BYTES)
    load_epoch()
    a(f"v_mov_b32 v{hA}, -1\nv_mov_b32 v{hA+1}, -1\nv_lshrrev_b32 v7, 4, v0")
    a(f"v_lshlrev_b32 v6, 3, v0\nv_add_u32 v6, {L_ML}, v6\ns_mov_b64 exec, 0x1ffff\nds_write_b64 v6, v[{hA}:{hA+1}]\ns_mov_b64 exec, -1")
    a("s_waitcnt vmcnt(19)")
    vM, vR, vX = 200, 201, 202
    for i in range(4): unpack(hU + 2 * i, hU + 2 * i + 1, hXA + i)
    def allsum(x, t):
        for r in (1, 2, 4, 8): dpp("v_add_f32", x, f"row_ror:{r}")
        rows_allreduce("v_add_f32", x, t)
    a(f"v_add_f32 v{vM}, v{hU}, v{hU+1}")
    for i in range(2, 8): a(f"v_add_f32 v{vM}, v{vM}, v{hU+i}")
    allsum(vM, vX)
    a(f"v_mul_f32 v{vM}, 0x3b000000, v{vM}")
    for i in range(8): a(f"v_sub_f32 v{hU+i}, v{hU+i}, v{vM}")
    a(f"v_mul_f32 v{vR}, v{hU}, v{hU}")
    for i in range(1, 8): a(f"v_fmac_f32 v{vR}, v{hU+i}, v{hU+i}")
    allsum(vR, vX)
    a(f"v_mul_f32 v{vR}, 0x3b000000, v{vR}")
    rnd1(vM); rnd1(vR)
    a(f"v_add_f32 v{vR}, 0x3727c5ac, v{vR}"); rnd1(vR)
    a(f"v_sqrt_f32 v{vR}, v{vR}"); rnd1(vR)
    a(f"v_rcp_f32 v{vR}, v{vR}")

    def normalise(x, n):
        for i in range(n): unpack(hU + 2 * i, hU + 2 * i + 1, x + i)
        for i in range(2 * n): a(f"v_sub_f32 v{hU+i}, v{hU+i}, v{vM}")
        for i in range(n): a(f"v_cvt_pk_bf16_f32 v{x+i}, v{hU+2*i}, v{hU+2*i+1}")
        for i in range(n): unpack(hU + 2 * i, hU + 2 * i + 1, x + i)
        for i in range(2 * n): a(f"v_mul_f32 v{hU+i}, v{hU+i}, v{vR}")
        for i in range(n): a(f"v_cvt_pk_bf16_f32 v{x+i}, v{hU+2*i}, v{hU+2*i+1}")

    def gemv(acc, w, npair, xsrc, tmp, waits=None):
        for p in range(npair):
            if waits: a(f"s_waitcnt vmcnt({waits(p)})")
            ra, rb = w + 8 * p, w + 8 * p + 4
            for q in range(4):
                a(f"v_perm_b32 v{tmp+2*q}, v{rb+q}, v{ra+q}, s{sLO}\nv_perm_b32 v{tmp+2*q+1}, v{rb+q}, v{ra+q}, s{sHI}")
            for j in range(8):
                a(f"v_dot2_f32_bf16 v{acc+j}, v{tmp+j}, {xsrc(p)}, {'0' if p == 0 else f'v{acc+j}'}")

    def publish64(x, soff):
        for j in range(4): a(f"v_permlane32_swap_b32 v{x+j}, v{x+4+j}")
        for j in range(4): a(f"v_add_f32 v{x+j}, v{x+j}, v{x+4+j}")
        for j in range(4): a(f"v_mov_b32 v{x+4+j}, v{x+j}")
        for j in range(4): a(f"v_permlane16_swap_b32 v{x+j}, v{x+4+j}")
        for j in range(4): a(f"v_add_f32 v{x+j}, v{x+j}, v{x+4+j}")
        for j in range(4): dpp("v_add_f32", x + j, "row_ror:8")
        tag4(x, hT)
        a(f"s_mov_b32 exec_lo, 0xff\ns_mov_b32 exec_hi, 0xff\nbuffer_store_dwordx4 v[{x}:{x+3}], v2, s[12:15], s{soff} offen sc1\ns_mov_b64 exec, -1")

    a("s_waitcnt vmcnt(16) lgkmcnt(0)")
    normalise(hXQ, 8)
    make_tags(hT)
    a("v_lshrrev_b32 v2, 5, v0\nv_lshl_add_u32 v2, v2, 7, v4")
    a(f"s_lshl_b32 s29, s{sG}, 13\ns_add_u32 s29, s29, {WS_Q}\ns_lshl_b32 s82, s{sS}, 8\ns_add_u32 s82, s82, s29")
    gemv(hA, hW, 8, lambda p: f"v{hXQ+p}", hU, lambda p: 14 - 2 * p)
    publish64(hA, 82)
    stamp(1)

    a("s_cmp_ge_u32 s2, 224\ns_cbranch_scc1 L_NOW1")
    srd(4, pW1, 512 * 3584); srd(8, pW2, 1792 * 1024); srd(16, pB1, 3584)
    a(f"s_and_b32 s81, s2, 7\ns_mul_i32 s81, s81, {64*3584}\ns_lshr_b32 s83, s2, 3\ns_lshl_b32 s83, s83, 7\ns_add_u32 s81, s81, s83\ns_lshl_b32 s82, s2, 13")
    a("v_mul_u32_u24 v3, 28672, v1\nv_add_u32 v3, v3, v4")
    for e in range(8):
        a(f"buffer_load_dwordx4 v[{hW1+4*e}:{hW1+4*e+3}], v3, s[4:7], s81 offen {WNT}")
        if e < 7: a("s_addk_i32 s81, 3584")
    a("v_bfe_u32 v3, v0, 3, 1\nv_lshl_add_u32 v3, v3, 3, v4\nbuffer_load_dwordx2 v[204:205], v3, s[16:19], s83 offen")
    for r in range(8):
        if r == 4: a("s_addk_i32 s82, 0x1000")
        a(f"buffer_load_dwordx4 v[{hW2+4*r}:{hW2+4*r+3}], v5, s[8:11], s82 offen offset:{1024*(r % 4)} {WNT}")
    normalise(hXF, 4)
    a(f"s_lshl_b32 s82, s2, 8\ns_add_u32 s82, s82, {WS_H}")
    gemv(hA, hW1, 4, lambda p: f"v{hXF+p}", hU, lambda p: 9 + 6 - 2 * p)
    publish64(hA, 82)
    a.settle()
    a.label("L_NOW1")
    stamp(4)

    a(f"v_lshlrev_b32 v3, 7, v7\nv_add_u32 v3, v3, v4\nv_bfe_u32 v6, v0, 3, 1\nv_lshl_add_u32 v3, v6, 3, v3\nv_add_u32 v3, {L_Q}, v3")
    gather("L_H0", hW, 8, 29, 5, vX, hT, P["QSLEEP"])
    stamp(2)
    for j in range(16): a(f"v_add_f32 v{hW+j}, v{hW+j}, v{hW+16+j}")
    for j in range(8): a(f"v_add_f32 v{hW+j}, v{hW+j}, v{hW+8+j}")
    for j in range(4): a(f"v_cvt_pk_bf16_f32 v{hW+j}, v{hW+2*j}, v{hW+2*j+1}")
    a(f"ds_write_b64 v3, v[{hW}:{hW+1}]\nds_write_b64 v3, v[{hW+2}:{hW+3}] offset:512\ns_waitcnt lgkmcnt(0)")
    stamp(3)
    a("s_barrier")

    a("s_cmp_ge_u32 s2, 224\ns_cbranch_scc1 L_NOW2")
    a(f"s_lshr_b32 s29, s2, 3\ns_lshl_b32 s29, s29, 11\ns_add_u32 s29, s29, {WS_H}")
    gather("L_H5", hW, 2, 29, 5, vX, hT, P["QSLEEP"])
    for j in range(4): a(f"v_add_f32 v{hW+j}, v{hW+j}, v{hW+4+j}")
    for sw in ("v_permlane16_swap_b32", "v_permlane32_swap_b32"):
        for j in range(4): a(f"v_mov_b32 v{hW+4+j}, v{hW+j}")
        for j in range(4): a(f"{sw} v{hW+j}, v{hW+4+j}")
        for j in range(4): a(f"v_add_f32 v{hW+j}, v{hW+j}, v{hW+4+j}")
    def rnd4(x, t):
        a(f"v_cvt_pk_bf16_f32 v{t}, v{x}, v{x+1}\nv_cvt_pk_bf16_f32 v{t+1}, v{x+2}, v{x+3}")
        unpack(x, x + 1, t); unpack(x + 2, x + 3, t + 1)
    rnd4(hW, hW + 8)
    unpack(hW + 4, hW + 5, 204); unpack(hW + 6, hW + 7, 205)
    for j in range(4): a(f"v_add_f32 v{hW+j}, v{hW+j}, v{hW+4+j}")
    rnd4(hW, hW + 8)
    for op in ("v_mul_f32 {t}, {x}, {x}", "v_mul_f32 {t}, {t}, {x}", "v_mul_f32 {t}, 0x3d372713, {t}", "v_add_f32 {t}, {x}, {t}",
               "v_mul_f32 {t}, 0xc0135761, {t}", "v_exp_f32 {t}, {t}", "v_add_f32 {t}, 1.0, {t}", "v_rcp_f32 {t}, {t}", "v_mul_f32 {x}, {x}, {t}"):
        for j in range(4): a(op.format(x=f"v{hW+j}", t=f"v{hW+4+j}"))
    a(f"v_cvt_pk_bf16_f32 v{hW}, v{hW}, v{hW+1}\nv_cvt_pk_bf16_f32 v{hW+1}, v{hW+2}, v{hW+3}")
    a("s_and_b32 s81, s2, 7\ns_add_u32 s82, s81, 8")
    for p in range(4): a(f"v_readlane_b32 s{sCLS+p}, v{hW + p % 2}, s{81 + p // 2}")
    gemv(hA, hW2, 4, lambda p: f"s{sCLS+p}", hU)
    tag4(hA, hT); tag4(hA + 4, hT)
    a(f"v_lshrrev_b32 v3, 2, v0\nv_mul_u32_u24 v3, {2*FSTRIDE}, v3\nv_and_b32 v6, 3, v0\nv_lshl_add_u32 v3, v6, 4, v3")
    a(f"s_lshl_b32 s81, s2, 6\ns_add_u32 s81, s81, {WS_F}\ns_add_u32 s82, s81, {FSTRIDE}")
    a(f"buffer_store_dwordx4 v[{hA}:{hA+3}], v3, s[12:15], s81 offen sc1\nbuffer_store_dwordx4 v[{hA+4}:{hA+7}], v3, s[12:15], s82 offen sc1")
    a.settle()
    a.label("L_NOW2")
    stamp(5)

    a(f"v_and_b32 v3, 15, v0\nv_lshlrev_b32 v6, 3, v3\nv_add_u32 v6, {L_ML}, v6")
    a.label("L_H2")
    a("s_sleep 4\nds_read_b64 v[8:9], v6\ns_waitcnt lgkmcnt(0)\nv_max_u32 v10, v8, v9\nv_cmp_eq_u32 vcc, -1, v10")
    spin_tail("L_H2")
    a("v_mov_b32 v12, v8")
    dpp("v_max_f32", 12, "row_ror:4"); dpp("v_max_f32", 12, "row_ror:8")
    a("v_sub_f32 v13, v8, v12\nv_mul_f32 v13, 0x3fb8aa3b, v13\nv_exp_f32 v13, v13\nv_mul_f32 v13, v13, v9")
    dpp("v_add_f32", 13, "row_ror:4"); dpp("v_add_f32", 13, "row_ror:8")
    a("v_mov_b32 v14, 0\nv_mov_b32 v15, 0")
    tag4(12, hT)
    a(f"s_lshl_b32 s32, s{sG}, 11\ns_add_u32 s32, s32, {WS_ML}\ns_lshl_b32 s81, s{sS}, 6\ns_add_u32 s81, s81, s32")
    a("s_mov_b64 exec, 15\nbuffer_store_dwordx4 v[12:15], v5, s[12:15], s81 offen sc1\ns_mov_b64 exec, -1")
    stamp(6)

    a("s_cmp_lt_u32 s2, 224\ns_cbranch_scc1 L_NOFIN")
    srd(4, pX, 1024); srd(8, pB2, 1024)
    a("s_bfe_u32 s82, s2, 0x40001\ns_lshl_b32 s82, s82, 6\ns_and_b32 s83, s2, 1\ns_lshl_b32 s83, s83, 3\ns_add_u32 s82, s82, s83")
    a("v_and_b32 v3, 3, v0\nv_lshlrev_b32 v3, 4, v3\nv_lshl_add_u32 v3, v7, 1, v3")
    a("buffer_load_ushort v204, v3, s[4:7], s82 offen\nbuffer_load_ushort v206, v3, s[8:11], s82 offen")
    a(f"s_and_b32 s29, s2, 31\ns_mul_i32 s29, s29, {FSTRIDE}\ns_add_u32 s29, s29, {WS_F}")
    gather("L_H1", hW, 14, 29, 5, vX, hT, P["QSLEEP"])
    for i in range(1, 14):
        for j in range(4): a(f"v_add_f32 v{hW+j}, v{hW+j}, v{hW+4*i+j}")
    quad_scatter_sum(hW)
    rnd1(hW)
    a(f"v_lshlrev_b32 v206, 16, v206\nv_lshlrev_b32 v204, 16, v204\nv_add_f32 v205, v{hW}, v206"); rnd1(205)
    a(f"v_lshlrev_b32 v3, 3, v0\nv_add_u32 v3, {L_FIN}, v3\nds_write_b64 v3, v[204:205]")
    a.settle()
    a.label("L_NOFIN")

    a(f"v_mov_b32 v6, {L_GO}")
    a.label("L_H4")
    a("s_sleep 4\nds_read_b32 v10, v6\ns_waitcnt lgkmcnt(0)\nv_cmp_eq_u32 vcc, -1, v10")
    spin_tail("L_H4")
    gather("L_H3", 12, 2, 32, 5, vX, hT, P["QSLEEP"])
    a("v_max_f32 v10, v12, v16")
    dpp("v_max_f32", 10, "row_ror:4"); dpp("v_max_f32", 10, "row_ror:8")
    rows_allreduce("v_max_f32", 10, 11)
    a("v_sub_f32 v12, v12, v10\nv_sub_f32 v16, v16, v10\nv_sub_f32 v8, v8, v10")
    a("v_mul_f32 v12, 0x3fb8aa3b, v12\nv_mul_f32 v16, 0x3fb8aa3b, v16\nv_mul_f32 v8, 0x3fb8aa3b, v8")
    a("v_exp_f32 v12, v12\nv_exp_f32 v16, v16\nv_exp_f32 v8, v8")
    a("v_mul_f32 v12, v12, v13\nv_fmac_f32 v12, v16, v17")
    dpp("v_add_f32", 12, "row_ror:4"); dpp("v_add_f32", 12, "row_ror:8")
    rows_allreduce("v_add_f32", 12, 11)
    a("v_rcp_f32 v12, v12\nv_mul_f32 v8, v8, v12")
    a(f"v_and_b32 v6, 3, v0\nv_lshlrev_b32 v6, 4, v6\nv_and_b32 v9, 12, v0\nv_add3_u32 v6, v6, v9, 0\nv_add_u32 v6, {L_FAC}, v6")
    a("s_mov_b64 exec, 0xffff\nds_write_b32 v6, v8\ns_waitcnt lgkmcnt(0)")
    stamp(7)
    a("s_branch L_EXIT")

    a.raw(f""".section .rodata,"a"
.p2align 6
.amdhsa_kernel {NAME}_kernel
  .amdhsa_next_free_vgpr 256
  .amdhsa_next_free_sgpr 102
  .amdhsa_accum_offset 256
  .amdhsa_group_segment_fixed_size 0
  .amdhsa_kernarg_size 104
  .amdhsa_user_sgpr_count 2
  .amdhsa_user_sgpr_kernarg_segment_ptr 1
  .amdhsa_system_sgpr_workgroup_id_x 1
  .amdhsa_float_denorm_mode_32 3
.end_amdhsa_kernel""")
    return a.text(), LDS, forced


if __name__ == "__main__":
    kw = {}
    out = f"cdna_kernels/{NAME}.s"
    for arg in sys.argv[1:]:
        k, v = arg.split("=")
        if k == "out": out = v
        else: kw[k] = int(v) if v.lstrip("-").isdigit() else v
    text, lds, forced = gen(**kw)
    open(out, "w").write(text)
    print("wrote", out, len(text), "bytes, lds", lds, "forced", forced)
```

```python
import sys
from asm import Asm

NAME = "parallel_sum__gqa_block_cached__dense_activation_gelu__decode"

DEF = dict(D=5, R=32, NP=0, NV=32, ROT=16, NT="nt", DBG=0, BUD=200, WNT="nt", NORND=0, MLPOS=48, QSLEEP=8, MAP="x", PWG=-1, PST=0, S1=0, S2=0, DE=0, DEN=0, WOP=0, WOT=0, NOWO=0, NOTAIL=0, CM=10, QM=1, FM=2, AD=0, A0=150, A1=143, AB=36, CD=7, CP=16, CN=4, CG=3, CC=6, CE=240, CSL=2, CST=4224, CX=4, L1=1, L2=1, LM=1, LF=0, DP="", CSP="", CLP="nt", CB=0, CM5=31, CGP="sc1", CR=56, CW=3, CK=1, CGL="sc1", NOF=0, NOML=0, NOH=0, WOL=1)

WS_O1, WS_O2, WS_F, WS_ML, WS_E, WS_Q, WS_H, WS_DBG = 0, 512 << 10, 640 << 10, 1088 << 10, 1120 << 10, 1280 << 10, 1344 << 10, 2 << 20
WS_PR = 1536 << 10
WS_BYTES = 4 << 20
FSTRIDE = 224 * 64
SLOT = 1040
SPIN = 400000


def gen(**kw):
    P = dict(DEF); P.update(kw)
    D, R, NP, NV, ROT, NT, DBG, BUD, WNT = (P[k] for k in ("D", "R", "NP", "NV", "ROT", "NT", "DBG", "BUD", "WNT"))
    RING = R * SLOT
    L_Q = 4 * RING
    L_ML, L_GO, L_FAC, L_FIN = L_Q + 1024, L_Q + 1024 + 128, L_Q + 1024 + 192, L_Q + 1024 + 256
    L_H = L_FIN + 512
    L_PR = L_H + 64
    CD = P["CD"]
    LDS = max(L_PR + (2048 if CD else 0), 84 << 10)
    a = Asm()
    hdr = open(f"cdna_kernels/{NAME}.s.ref").read().split("; Override")[0]
    a.raw(hdr.rstrip())
    a.raw(f"; @launch grid=(256,1,1) block=({384 if CD else 320},1,1) lds={LDS}")
    a.raw('.amdgcn_target "amdgcn-amd-amdhsa--gfx950"')
    a.raw(f".text\n.globl {NAME}_kernel\n.p2align 8\n.type {NAME}_kernel,@function\n{NAME}_kernel:")

    pX, pK, pV, pWQ, pWO, pW1, pB1, pW2, pB2, pOUT, pDBG, pWS = 36, 38, 40, 42, 44, 48, 50, 52, 54, 56, 58, 60
    sG, sS, sKP, sVP, sMSK, sLB, sLO, sHI, sSPIN = 62, 63, 64, 65, 66, 68, 69, 70, 80
    sCLS, sE = 72, 28
    sCG, sCS = 33, 34

    def remap(mode):
        if mode < 8: a(f"s_add_u32 s{sCG}, s{sG}, {mode}\ns_and_b32 s{sCG}, s{sCG}, 7\ns_mov_b32 s{sCS}, s{sS}")
        elif mode == 8: a(f"s_lshr_b32 s{sCG}, s2, 5\ns_and_b32 s{sCS}, s2, 31")
        elif mode == 9: a(f"s_and_b32 s{sCG}, s{sS}, 3\ns_add_u32 s{sCG}, s{sCG}, s{sG}\ns_add_u32 s{sCG}, s{sCG}, 1\ns_and_b32 s{sCG}, s{sCG}, 7\ns_mov_b32 s{sCS}, s{sS}")

        elif mode == 10:
            a(f"s_lshr_b32 s{sCG}, s{sS}, 3\ns_lshl_b32 s{sCG}, s{sCG}, 1\ns_andn2_b32 s{sCS}, 1, s{sG}\ns_add_u32 s{sCG}, s{sCG}, s{sCS}")
            a(f"s_and_b32 s{sCS}, s{sS}, 7\ns_lshl_b32 s{sCS}, s{sCS}, 3\ns_add_u32 s{sCS}, s{sCS}, s{sG}\ns_lshr_b32 s{sCS}, s{sCS}, 1")

    sF = 35
    def final_index():
        if P["FM"] == 0: a(f"s_and_b32 s{sF}, s2, 31")
        else:
            a(f"s_add_u32 s{sF}, s2, {2*P['FM']}\ns_and_b32 s{sF}, s{sF}, 7\ns_lshl_b32 s{sF}, s{sF}, 2\ns_bfe_u32 s82, s2, 0x20003\ns_add_u32 s{sF}, s{sF}, s82")
        a(f"s_lshr_b32 s82, s{sF}, 1\ns_lshl_b32 s82, s82, 6\ns_and_b32 s83, s{sF}, 1\ns_lshl_b32 s83, s83, 3\ns_add_u32 s82, s82, s83")

    def load_epoch():
        a(f"s_add_u32 s30, s{pWS}, {WS_E}\ns_addc_u32 s31, s{pWS+1}, 0\ns_load_dword s{sE}, s[30:31], 0")

    def make_tags(vt):
        a(f"s_add_u32 s{sE}, s{sE}, 0x9b35e3c1\nv_and_b32 v{vt+3}, 1, v0\nv_lshlrev_b32 v{vt+3}, 4, v{vt+3}\nv_lshrrev_b32 v{vt+3}, v{vt+3}, s{sE}")
        for i in range(4): a(f"v_bfe_u32 v{vt+i}, v{vt+3}, {4*i}, 4")

    def tag4(x, vt):
        for i in range(4): a(f"v_and_or_b32 v{x+i}, v{x+i}, -16, v{vt+i}")

    def untag(t, x, n, vt):
        for i in range(n): a(f"v_xor_b32 v{x+i}, v{vt + i % 4}, v{x+i}")
        a(f"v_or3_b32 v{t}, v{x}, v{x+1}, v{x+2}")
        for i in range(3, n - 1, 2): a(f"v_or3_b32 v{t}, v{t}, v{x+i}, v{x+i+1}")
        a(f"v_or_b32 v{t}, v{t}, v{x+n-1}\nv_and_b32 v{t}, 15, v{t}\nv_cmp_ne_u32 vcc, 0, v{t}\ns_wqm_b64 exec, vcc")

    def gather(label, dst, n, sbase, vaddr, t, vt, sleep=0, stride=1024):
        if sleep:
            a(f"s_branch {label}A")
            a.label(label)
            a(f"s_sleep {sleep}")
            a.label(label + "A")
        else:
            a.label(label)
        per = max(1, 4096 // stride)
        for i in range(n):
            if i % per == 0 and i: a(f"s_add_u32 s81, s{sbase}, {stride*i}")
            a(f"buffer_load_dwordx4 v[{dst+4*i}:{dst+4*i+3}], v{vaddr}, s[12:15], s{81 if i >= per else sbase} offen offset:{stride*(i % per)} sc1")
        a("s_waitcnt vmcnt(0)")
        untag(t, dst, 4 * n, vt)
        spin_tail(label)
        a("s_mov_b64 exec, -1")

    def srd(d, p, nbytes):
        a(f"s_mov_b32 s{d}, s{p}\ns_mov_b32 s{d+1}, s{p+1}\ns_mov_b32 s{d+2}, {nbytes}\ns_mov_b32 s{d+3}, 0x20000")

    def stamp(i):
        if DBG: a(f"s_memrealtime s[{84+2*i}:{85+2*i}]")

    def dump_stamps():
        if not DBG: return
        if P["PWG"] >= 0:
            a(f"s_waitcnt lgkmcnt(0)\ns_cmp_lg_u32 s2, {P['PWG']}\ns_cbranch_scc1 L_PROBE_END\ns_cmp_lg_u32 s3, 1\ns_cbranch_scc1 L_PROBE_END")
            a(f"s_add_u32 s81, s{84+2*P['PST']}, 10000")
            a.label("L_PROBE")
            a("s_memrealtime s[82:83]\ns_waitcnt lgkmcnt(0)\ns_sub_u32 s82, s82, s81\ns_cmp_lt_i32 s82, 0\ns_cbranch_scc1 L_PROBE")
            a.label("L_PROBE_END")
            return
        a("s_mov_b64 exec, -1\ns_waitcnt lgkmcnt(0)")
        a(f"s_lshl_b32 s81, s2, 3\ns_add_u32 s81, s81, s3\ns_lshl_b32 s81, s81, 6\ns_add_u32 s81, s81, {WS_DBG}")
        a("s_getreg_b32 s82, hwreg(HW_REG_XCC_ID)\nv_mov_b32 v1, 0\ns_mov_b64 exec, 1")
        for i in range(9):
            a(f"v_mov_b32 v2, s{84+2*i}\nbuffer_store_dword v2, v1, s[12:15], s81 offen offset:{4*i}")
        a("v_mov_b32 v2, s82\nbuffer_store_dword v2, v1, s[12:15], s81 offen offset:60\ns_waitcnt vmcnt(0)")

    def unpack(lo, hi, src):
        a(f"v_lshlrev_b32 v{lo}, 16, v{src}\nv_and_b32 v{hi}, 0xffff0000, v{src}")

    def rnd1(x):
        a(f"v_cvt_pk_bf16_f32 v{x}, v{x}, v{x}\nv_and_b32 v{x}, 0xffff0000, v{x}")

    def dpp(op, x, ctl):
        a(f"{op}_dpp v{x}, v{x}, v{x} {ctl} row_mask:0xf bank_mask:0xf")

    def rows_allreduce(op, x, t):
        for sw in ("v_permlane16_swap_b32", "v_permlane32_swap_b32"):
            a(f"v_mov_b32 v{t}, v{x}\n{sw} v{t}, v{x}\n{op} v{x}, v{t}, v{x}")

    def quad_scatter_sum(x):
        a(f"v_permlane32_swap_b32 v{x}, v{x+2}\nv_permlane32_swap_b32 v{x+1}, v{x+3}")
        a(f"v_add_f32 v{x}, v{x}, v{x+2}\nv_add_f32 v{x+1}, v{x+1}, v{x+3}")
        a(f"v_permlane16_swap_b32 v{x}, v{x+1}\nv_add_f32 v{x}, v{x}, v{x+1}")
        dpp("v_add_f32", x, "row_ror:4"); dpp("v_add_f32", x, "row_ror:8")

    def umax_tree(t, rs):
        rs = list(rs)
        a(f"v_max3_u32 v{t}, v{rs[0]}, v{rs[1]}, v{rs[2 % len(rs)]}")
        rs = rs[3:]
        while rs:
            a(f"v_max3_u32 v{t}, v{t}, v{rs[0]}, v{rs[1 % len(rs)]}"); rs = rs[2:]

    def spin_tail(label):
        a(f"s_sub_u32 s{sSPIN}, s{sSPIN}, 1\ns_cbranch_scc1 L_EXIT\ns_cbranch_vccnz {label}")

    stamp(0)
    a("s_load_dwordx16 s[36:51], s[0:1], 0\ns_load_dwordx8 s[52:59], s[0:1], 64\ns_load_dwordx2 s[60:61], s[0:1], 96")
    a("s_cmp_lt_u32 s2, 0x100\ns_cbranch_scc1 L_LIVE\ns_waitcnt lgkmcnt(0)\ns_endpgm")
    a.label("L_LIVE")
    a("v_lshrrev_b32 v1, 6, v0\nv_and_b32 v0, 63, v0")
    if P["MAP"] == "x": a(f"s_and_b32 s{sG}, s2, 7\ns_lshr_b32 s{sS}, s2, 3")
    else: a(f"s_and_b32 s{sS}, s2, 31\ns_lshr_b32 s{sG}, s2, 5")
    a("v_readfirstlane_b32 s3, v1")
    a(f"s_mov_b32 s{sSPIN}, {SPIN}\ns_mov_b32 s{sLO}, 0x05040100\ns_mov_b32 s{sHI}, 0x07060302")
    a("s_cmp_lt_u32 s3, 4\ns_cbranch_scc1 L_STREAM")
    if CD: a("s_cmp_eq_u32 s3, 5\ns_cbranch_scc1 L_CTRL")

    hXA, hXQ, hXF, hW, hW1, hW2, hT, hA, hU = 8, 12, 20, 32, 96, 128, 24, 160, 168
    a("v_lshlrev_b32 v5, 4, v0\nv_lshrrev_b32 v1, 3, v0\nv_lshlrev_b32 v2, 5, v1\nv_and_b32 v4, 7, v0\nv_lshlrev_b32 v4, 4, v4\nv_lshl_add_u32 v3, v1, 17, v4")
    remap(P["QM"])
    a(f"s_lshr_b32 s83, s{sCS}, 3\ns_lshl_b32 s81, s83, 20\ns_lshl_b32 s82, s{sCG}, 10\ns_add_u32 s81, s81, s82\ns_and_b32 s82, s{sCS}, 7\ns_lshl_b32 s82, s82, 7\ns_add_u32 s81, s81, s82\ns_lshl_b32 s82, s83, 8")
    a("s_waitcnt lgkmcnt(0)")
    srd(4, pX, 1024); srd(16, pWQ, 4 << 20)
    a(f"buffer_load_dwordx4 v[{hXA}:{hXA+3}], v5, s[4:7], 0 offen")
    a(f"buffer_load_dwordx4 v[{hXQ}:{hXQ+3}], v2, s[4:7], s82 offen\nbuffer_load_dwordx4 v[{hXQ+4}:{hXQ+7}], v2, s[4:7], s82 offen offset:16")
    a(f"s_and_b32 s82, s2, 7\ns_lshl_b32 s82, s82, 7\nv_lshlrev_b32 v2, 4, v1\nbuffer_load_dwordx4 v[{hXF}:{hXF+3}], v2, s[4:7], s82 offen")
    for i in range(16):
        a(f"buffer_load_dwordx4 v[{hW+4*i}:{hW+4*i+3}], v3, s[16:19], s81 offen {WNT}")
        if i < 15: a("s_addk_i32 s81, 0x2000")
    a("s_branch L_HELP")

    vKO, vVO, vRD, vMK, vMAX, vL, vS, vA, vQ, vACC, vD, vT0, vT, vV = 1, 2, 3, 8, 12, 13, 16, 48, 64, 64, 80, 84, 88, 120
    assert vV + 4 * NV <= 256
    a.label("L_STREAM")
    a("s_setprio 2")
    a(f"s_lshl_b32 s81, s{sG}, 24\ns_lshl_b32 s82, s{sS}, 19\ns_add_u32 s81, s81, s82\ns_lshl_b32 s82, s3, 10\ns_add_u32 s81, s81, s82")
    a(f"v_lshlrev_b32 v{vVO}, 4, v0\nv_lshrrev_b32 v7, 4, v0\nv_lshlrev_b32 v14, 6, v7\nv_xor_b32 v{vKO}, v14, v{vVO}")
    a(f"v_add_u32 v{vVO}, s81, v{vVO}\nv_add_u32 v{vKO}, s81, v{vKO}")
    a(f"s_mov_b32 s{sMSK}, 0x7ffff\ns_mul_i32 s{sKP}, s2, {ROT*1024}\ns_and_b32 s{sKP}, s{sKP}, s{sMSK}\ns_mov_b32 s{sVP}, s{sKP}")
    a(f"s_mul_i32 s{sLB}, s3, {RING}")
    a("s_waitcnt lgkmcnt(0)")
    srd(8, pV, 128 << 20); srd(4, pK, 128 << 20)

    seq = [("V", i) for i in range(NP)] + [("K", i) for i in range(128)] + [("V", i) for i in range(NP, 128)]
    WOP = P["WOP"]
    if WOP:
        assert vV + 4 * NV <= 240
        seq = seq[:len(seq) - WOP] + [("W", i) for i in range(4)] + seq[len(seq) - WOP:]
    pos = {x: n for n, x in enumerate(seq)}
    st = dict(rd=0, mf=0, sel=0, rnd=0, sm=0, perm=0, ap=0, pv=0, q=False, landed=-1, setup=0)
    vslot = lambda vi: vV + 4 * (vi % NV)

    def setup_pieces():
        def p0():
            a("v_and_b32 v14, 3, v0\nv_bfe_u32 v15, v0, 2, 2")
            a(f"v_mul_u32_u24 v{vRD}, {SLOT}, v14\nv_lshl_add_u32 v{vRD}, v15, 8, v{vRD}\nv_lshl_add_u32 v{vRD}, v7, 4, v{vRD}\nv_add_u32 v{vRD}, s{sLB}, v{vRD}")
            for ks in (3, 2, 1, 0):
                a(f"v_xor_b32 v{vT0}, {ks}, v15\nv_lshl_add_u32 v{vRD+ks}, v{vT0}, 6, v{vRD}")
        def p1():
            for i in range(4):
                m = 0x11111111 << i
                a(f"s_mov_b32 s{sCLS+2*i}, {hex(m)}\ns_mov_b32 s{sCLS+2*i+1}, {hex(m)}")
                a(f"v_cndmask_b32 v{vMK+i}, 0, -1, s[{sCLS+2*i}:{sCLS+2*i+1}]")
            a(f"v_mov_b32 v{vMAX}, 0xff800000\nv_mov_b32 v{vL}, 0")
        def p2():
            srd(12, pWS, WS_BYTES); srd(16, pWO, 4 << 20); srd(20, pOUT, 1024)
            load_epoch()
            a(f"v_lshlrev_b32 v15, 8, v15\nv_lshl_add_u32 v15, v7, 4, v15\nv_add_u32 v15, {L_Q}, v15")
            if CD: a(f"s_lshl_b32 s81, s3, 8\ns_add_u32 s81, s81, {L_PR}\nv_lshl_add_u32 v248, v0, 2, s81")
        return [p0, p1, p2]
    setup = setup_pieces()

    def tile_dst(T):
        b = T // 2
        return (b % 4), vS + 8 * (b // 4) + 4 * (T % 2)

    def k_sel(T):
        t, dst = tile_dst(T)
        if t == 0: return 0
        for i in range(4):
            a(f"v_cndmask_b32 v{dst+i}, v{dst+i}, v{vD+i}, s[{sCLS+2*t}:{sCLS+2*t+1}]")
        return 16

    def k_mfma(T):
        t, dst = tile_dst(T)
        d = dst if t == 0 else vD
        a("s_waitcnt lgkmcnt(0)")
        for ks in range(4):
            c = "0" if ks == 0 else f"v[{d}:{d+3}]"
            a(f"v_mfma_f32_16x16x32_bf16 v[{d}:{d+3}], v[{vA+4*ks}:{vA+4*ks+3}], v[{vQ+4*ks}:{vQ+4*ks+3}], {c}")
        return 64

    def k_read(T):
        off = ((4 * T) % R) * SLOT
        for ks in range(4):
            a(f"ds_read_b128 v[{vA+4*ks}:{vA+4*ks+3}], v{vRD+ks} offset:{off}")
        return 24

    def k_round(j):
        x = vS + 4 * j
        if P["NORND"]:
            for i in range(4): a(f"v_mul_f32 v{x+i}, 0x3db504f3, v{x+i}")
            a(f"v_max3_f32 v{vMAX}, v{vMAX}, v{x}, v{x+1}\nv_max3_f32 v{vMAX}, v{vMAX}, v{x+2}, v{x+3}")
            return 30
        a(f"v_cvt_pk_bf16_f32 v{vT0}, v{x}, v{x+1}\nv_cvt_pk_bf16_f32 v{vT0+1}, v{x+2}, v{x+3}")
        unpack(x, x + 1, vT0); unpack(x + 2, x + 3, vT0 + 1)
        for i in range(4): a(f"v_mul_f32 v{x+i}, 0x3db504f3, v{x+i}")
        a(f"v_cvt_pk_bf16_f32 v{vT0}, v{x}, v{x+1}\nv_cvt_pk_bf16_f32 v{vT0+1}, v{x+2}, v{x+3}")
        unpack(x, x + 1, vT0); unpack(x + 2, x + 3, vT0 + 1)
        a(f"v_max3_f32 v{vMAX}, v{vMAX}, v{x}, v{x+1}\nv_max3_f32 v{vMAX}, v{vMAX}, v{x+2}, v{x+3}")
        return 80

    def softmax(j):
        if j == 0:
            dpp("v_max_f32", vMAX, "quad_perm:[1,0,3,2]"); dpp("v_max_f32", vMAX, "quad_perm:[2,3,0,1]")
            rows_allreduce("v_max_f32", vMAX, vT0)
            for i in range(8): a(f"v_mov_b32 v{vACC+i}, 0")
            stamp(2)
            return 100
        if j <= 8:
            x = vS + 4 * (j - 1)
            for i in range(4): a(f"v_sub_f32 v{x+i}, v{x+i}, v{vMAX}")
            for i in range(4): a(f"v_mul_f32 v{x+i}, 0x3fb8aa3b, v{x+i}")
            for i in range(4): a(f"v_exp_f32 v{x+i}, v{x+i}")
            a(f"v_add_f32 v{vT0}, v{x}, v{x+1}\nv_add_f32 v{vT0+1}, v{x+2}, v{x+3}")
            dst = vS + 8 * ((j - 1) // 2) + 2 * ((j - 1) % 2)
            a(f"v_cvt_pk_bf16_f32 v{dst}, v{x}, v{x+1}\nv_cvt_pk_bf16_f32 v{dst+1}, v{x+2}, v{x+3}")
            a(f"v_add_f32 v{vL}, v{vL}, v{vT0}\nv_add_f32 v{vL}, v{vL}, v{vT0+1}")
            return 100
        dpp("v_add_f32", vL, "quad_perm:[1,0,3,2]"); dpp("v_add_f32", vL, "quad_perm:[2,3,0,1]")
        rows_allreduce("v_add_f32", vL, vT0)
        a(f"v_min_u32 v{vMAX}, -2, v{vMAX}\nv_min_u32 v{vL}, -2, v{vL}")
        a(f"s_lshl_b32 s81, s3, 5\ns_add_u32 s81, s81, {L_ML}\nv_lshl_add_u32 v{vT0}, v0, 1, s81")
        a(f"s_mov_b64 exec, 0x1111\nds_write_b64 v{vT0}, v[{vMAX}:{vMAX+1}]\ns_mov_b64 exec, -1")
        return 100

    def v_perm(pr):
        ra, rb, p = vslot(2 * pr), vslot(2 * pr + 1), pr % 4
        for q in range(4):
            a(f"v_perm_b32 v{vT+8*q+p}, v{rb+q}, v{ra+q}, s{sLO}\nv_perm_b32 v{vT+8*q+4+p}, v{rb+q}, v{ra+q}, s{sHI}")
        return 32

    def a_prep(b):
        t, src = b % 4, vS + 8 * (b // 4)
        for i in range(4):
            for p in range(4):
                a(f"v_and_b32_dpp v{vA+4*i+p}, v{src+p}, v{vMK+i} quad_perm:[{t},{t},{t},{t}] row_mask:0xf bank_mask:0xf")
        return 64

    def pv_mfma(h):
        jj = h % 2
        for i in range(4):
            j = 4 * jj + i
            d = f"v[{vACC+4*jj}:{vACC+4*jj+3}]"
            a(f"v_mfma_f32_16x16x32_bf16 {d}, v[{vA+4*i}:{vA+4*i+3}], v[{vT+4*j}:{vT+4*j+3}], {d}")
        return 64

    def work(budget):
        spent = 0
        landed = lambda x: pos[x] <= st["landed"]
        if st["setup"] < len(setup):
            setup[st["setup"]](); st["setup"] += 1
            return 60
        if st["sel"] < st["mf"]:
            spent += k_sel(st["sel"]) + 1; st["sel"] += 1
        if st["q"] and st["mf"] < st["rd"]:
            spent += k_mfma(st["mf"]); st["mf"] += 1
        if st["rd"] < 32 and st["rd"] == st["mf"] and landed(("K", 4 * st["rd"] + 3)):
            spent += k_read(st["rd"]); st["rd"] += 1
        while spent < budget:
            if st["rnd"] < 8 and st["sel"] >= 8 * (st["rnd"] // 2) + 7 + st["rnd"] % 2:
                spent += k_round(st["rnd"]); st["rnd"] += 1
            elif st["pv"] < 32 and st["ap"] > st["pv"] // 2 and st["perm"] >= 4 * (st["pv"] // 2 + 1):
                spent += pv_mfma(st["pv"]); st["pv"] += 1
            elif st["ap"] < 16 and st["pv"] == 2 * st["ap"] and st["sm"] >= 3 + 2 * (st["ap"] // 4):
                spent += a_prep(st["ap"]); st["ap"] += 1
            elif st["perm"] < 64 and st["pv"] >= 2 * (st["perm"] // 4) and landed(("V", 2 * st["perm"] + 1)):
                spent += v_perm(st["perm"]); st["perm"] += 1
            elif st["rnd"] == 8 and st["sm"] < 10:
                spent += softmax(st["sm"]); st["sm"] += 1
            else:
                break
        return spent

    forced = 0
    for n, (kind, i) in enumerate(seq):
        if kind == "W":
            if n - D > st["landed"]:
                a(f"s_waitcnt vmcnt({D-1})"); st["landed"] = n - D
            a(f"s_mov_b32 s81, {4096*i}\nbuffer_load_dwordx4 v[{240+4*i}:{243+4*i}], v{vKO}, s[16:19], s81 offen {WNT}")
            work(BUD)
            continue
        free = (lambda: i < R or (i - R) // 4 < st["mf"]) if kind == "K" else (lambda: i < NV or (i - NV) // 2 < st["perm"])
        while not free():
            assert work(1) > 0, (n, kind, i, st)
            forced += 1
        sp = sKP if kind == "K" else sVP
        if kind == "K":
            a(f"s_mov_b32 m0, s{sLB}" if i % R == 0 else f"s_addk_i32 m0, {SLOT}")
        Dn = P["DE"] if n >= len(seq) - P["DEN"] else D
        if P["DP"]: Dn = int(str(P["DP"])[n % len(str(P["DP"]))])
        if CD and n >= R:
            if n % 4 == 0: a(f"v_mov_b32 v249, {n}\nds_write_b32 v248, v249\nds_read_b32 v250, v248 offset:1024")
            if n % 4 == 1: a("s_waitcnt lgkmcnt(0)\nv_cmp_lt_i32 vcc, v249, v250")
            if n > R + 1:
                a(f"s_cbranch_vccnz L_F{n}\ns_waitcnt vmcnt({D-1})")
                a.label(f"L_F{n}")
                Dn = CD
        if P["AD"] and n >= P["AB"]:
            if n % 4 == 0: a("s_memrealtime s[26:27]")
            if n % 4 == 1: a(f"s_waitcnt lgkmcnt(0)\ns_sub_u32 s26, s26, s84\ns_cmp_gt_u32 s26, {P['A0'] + P['A1'] * n // 10}\ns_cselect_b64 vcc, -1, 0")
            if n > P["AB"] + 1:
                a(f"s_cbranch_vccnz L_F{n}\ns_waitcnt vmcnt({D-1})")
                a.label(f"L_F{n}")
                Dn = P["AD"]
        if n - Dn > st["landed"]:
            a(f"s_waitcnt vmcnt({Dn-1})"); st["landed"] = n - Dn
        if kind == "K":
            a(f"buffer_load_dwordx4 v{vKO}, s[4:7], s{sp} offen {NT} lds")
        else:
            r = vslot(i)
            a(f"buffer_load_dwordx4 v[{r}:{r+3}], v{vVO}, s[8:11], s{sp} offen {NT}")
        a(f"s_addk_i32 s{sp}, 0x1000\ns_and_b32 s{sp}, s{sp}, s{sMSK}")
        if (kind, i) == ("K", R - 1):
            assert st["setup"] == len(setup)
            stamp(7)
            a("s_barrier")
            stamp(1)
            for ks in range(4):
                a(f"ds_read_b128 v[{vQ+4*ks}:{vQ+4*ks+3}], v15 offset:{64*ks}")
            st["q"] = True
        if n == len(seq) - P["MLPOS"]:
            a(f"v_mov_b32 v14, {L_GO}\ns_mov_b64 exec, 1\nds_write_b32 v14, v14\ns_mov_b64 exec, -1")
        if n == len(seq) - max(12, WOP + 6):
            assert st["sm"] == 10
            make_tags(vD)
            remap(P["CM"])
            a(f"s_lshl_b32 s81, s{sCG}, 19\ns_lshr_b32 s82, s{sCS}, 2\ns_lshl_b32 s82, s82, 16\ns_add_u32 s81, s81, s82")
            a(f"s_lshl_b32 s82, s3, 14\ns_add_u32 s81, s81, s82\ns_and_b32 s82, s{sCS}, 3\ns_lshl_b32 s82, s82, 8\ns_add_u32 s81, s81, s82")
            a(f"v_and_b32 v14, 15, v0\nv_lshlrev_b32 v14, 4, v14\nv_lshl_add_u32 v14, v7, 10, v14\nv_add_u32 v{vKO}, s81, v14")
            a(f"s_lshl_b32 s81, s{sCG}, 18\ns_lshr_b32 s83, s{sCS}, 3\ns_lshl_b32 s83, s83, 16\ns_add_u32 s81, s81, s83\ns_add_u32 s81, s81, s82")
            a(f"s_and_b32 s83, s{sCS}, 4\ns_lshl_b32 s83, s83, 10\ns_add_u32 s81, s81, s83\ns_lshl_b32 s83, s3, 14\ns_add_u32 s81, s81, s83\nv_add_u32 v251, s81, v14")
            srd(4, pW2, 1792 * 1024)
            a(f"s_lshl_b32 s81, s3, 4\ns_add_u32 s81, s81, {L_H}\nv_lshl_add_u32 v252, v7, 2, s81")
            a(f"v_lshlrev_b32 v6, 4, v0\nv_add_u32 v3, s{sLB}, v6")
            a("v_and_b32 v14, 1, v0\nv_lshlrev_b32 v14, 10, v14\nv_lshrrev_b32 v15, 1, v0\nv_lshl_add_u32 v4, v15, 4, v14\ns_lshl_b32 s81, s3, 8\nv_add_u32 v4, s81, v4")
            if P["L1"]:
                a(f"s_lshl_b32 s81, s{sG}, 16\ns_lshl_b32 s82, s3, 14\ns_add_u32 s82, s82, s81\ns_lshl_b32 s83, s{sS}, 8\ns_add_u32 s82, s82, s83")
                a("v_and_b32 v14, 15, v0\nv_lshlrev_b32 v14, 4, v14\nv_lshl_add_u32 v5, v7, 13, v14\nv_add_u32 v5, s82, v5")
                a(f"s_lshl_b32 s81, s{sCG}, 16\ns_lshr_b32 s82, s{sCS}, 2\ns_lshl_b32 s82, s82, 13\ns_add_u32 s82, s82, s81\ns_lshl_b32 s81, s3, 6\ns_add_u32 s82, s82, s81")
                a("v_lshrrev_b32 v14, 2, v0\nv_lshlrev_b32 v14, 8, v14\nv_and_b32 v15, 3, v0\nv_lshl_add_u32 v6, v15, 4, v14\nv_add_u32 v6, s82, v6\ns_movk_i32 s29, 0x1000")
            else:
                a(f"s_lshl_b32 s81, s{sG}, 16\ns_lshl_b32 s82, s3, 14\ns_add_u32 s82, s82, s81\ns_lshl_b32 s83, s{sS}, 6\ns_add_u32 s82, s82, s83")
                a("v_lshrrev_b32 v14, 2, v0\nv_lshlrev_b32 v14, 11, v14\nv_and_b32 v15, 3, v0\nv_lshl_add_u32 v5, v15, 4, v14\nv_add_u32 v5, s82, v5")
                a(f"s_lshl_b32 s81, s{sCG}, 16\ns_and_b32 s82, s{sCS}, 28\ns_add_u32 s82, s82, s3\ns_lshl_b32 s82, s82, 11\ns_add_u32 s82, s82, s81\nv_add_u32 v6, s82, v6")
                a("s_movk_i32 s29, 0x400")
        elif n >= D - 1:
            work(BUD)
    vW = [vslot(128 + i) for i in range(6)]
    assert (128 + 5 - NV) // 2 < st["perm"]
    WOL = P["WOL"]
    def tile_loads(first, last):
        for i in range(first, last):
            if i < 4: a(f"s_movk_i32 s81, {4096*i}\nbuffer_load_dwordx4 v[{vW[i]}:{vW[i]+3}], v{vKO}, s[16:19], s81 offen {WNT}")
            else: a(f"s_movk_i32 s81, {8192*(i-4)}\nbuffer_load_dwordx4 v[{vW[i]}:{vW[i]+3}], v251, s[4:7], s81 offen {WNT}")
    NW = (6, 0, 0, 4, 2)[WOL]
    tile_loads(0, NW)
    a(f"s_lshl_b32 s81, s3, 4\ns_add_u32 s81, s81, {L_FAC}\nv_mov_b32 v7, s81")
    n = len(seq)
    while work(10**6): pass
    while st["landed"] < n - 1:
        st["landed"] += 1
        if seq[st["landed"]][1] % 2 == 1:
            a(f"s_waitcnt vmcnt({n - 1 - st['landed'] + NW})")
            if st["landed"] == n - 1:
                stamp(3)
                if WOL != 2: tile_loads(NW, 6)
            while work(10**6): pass
    assert st["pv"] == 32 and st["sm"] == 10

    def hold():
        a("s_waitcnt lgkmcnt(0)\ns_add_u32 s81, s84, 4800")
        a.label("L_HOLD")
        a("s_sleep 8\ns_memrealtime s[82:83]\ns_waitcnt lgkmcnt(0)\ns_sub_u32 s82, s82, s81\ns_cmp_lt_i32 s82, 0\ns_cbranch_scc1 L_HOLD")
    if P["NOTAIL"] == 1: hold()
    a(f"ds_write_b128 v3, v[{vACC}:{vACC+3}]\nds_write_b128 v3, v[{vACC+4}:{vACC+7}] offset:1024")
    a("s_waitcnt lgkmcnt(0)\ns_barrier")
    a("s_mov_b32 exec_lo, -1\ns_mov_b32 exec_hi, 0")
    a(f"ds_read_b128 v[16:19], v7")
    for w in range(4):
        if w == 2: a(f"v_add_u32 v14, {2*RING}, v4")
        a(f"ds_read_b128 v[{20+4*w}:{23+4*w}], v{4 if w < 2 else 14} offset:{(w % 2)*RING}")
    a("s_waitcnt lgkmcnt(3)")
    for i in range(4): a(f"v_mul_f32 v{20+i}, v16, v{20+i}")
    for w in range(1, 4):
        a(f"s_waitcnt lgkmcnt({3-w})")
        for i in range(4): a(f"v_fmac_f32 v{20+i}, v{16+w}, v{20+4*w+i}")
    tag4(20, vD)
    a("buffer_store_dwordx4 v[20:23], v5, s[12:15], 0 offen sc1")
    a("s_mov_b64 exec, -1")
    stamp(4)
    if WOL == 2: tile_loads(0, 6)
    a("ds_read_b32 v18, v252\nv_mov_b32 v19, 0")
    if P["NOTAIL"] == 2: hold()
    a("buffer_load_dwordx4 v[24:27], v6, s[12:15], 0 offen sc1\nbuffer_load_dwordx4 v[28:31], v6, s[12:15], s29 offen sc1")
    a(f"v_lshlrev_b32 v3, 5, v0\ns_add_u32 s81, s{sLB}, 4096\nv_add_u32 v3, s81, v3")
    a("v_lshrrev_b32 v14, 3, v0\nv_lshlrev_b32 v4, 7, v14\nv_and_b32 v15, 3, v0\nv_lshl_add_u32 v4, v15, 5, v4\nv_bfe_u32 v14, v0, 2, 1\nv_lshl_add_u32 v4, v14, 4, v4")
    a(f"s_and_b32 s81, s{sCS}, 3\ns_lshl_b32 s81, s81, 15\ns_lshl_b32 s82, s{sCG}, 3\ns_lshr_b32 s83, s{sCS}, 2\ns_add_u32 s82, s82, s83\ns_lshl_b32 s82, s82, {9 if P['L2'] else 6}\ns_add_u32 s81, s81, s82\ns_add_u32 s81, s81, {WS_O2}")
    if P["L2"]: a("v_lshl_add_u32 v1, v0, 4, s81")
    else: a("v_lshrrev_b32 v14, 2, v0\nv_lshlrev_b32 v14, 12, v14\nv_lshl_add_u32 v14, v15, 4, v14\nv_add_u32 v1, s81, v14")
    a(f"v_add_u32 v2, {2*RING}, v4")
    for j in range(8): a(f"v_mov_b32 v{vT+4*j+3}, 0")
    a(f"s_waitcnt vmcnt({2 if WOL == 2 else 3}) lgkmcnt(0)")
    for q in range(4):
        for p in range(3):
            a(f"v_perm_b32 v{vT+8*q+p}, v{vW[2*p+1]+q}, v{vW[2*p]+q}, s{sLO}\nv_perm_b32 v{vT+8*q+4+p}, v{vW[2*p+1]+q}, v{vW[2*p]+q}, s{sHI}")
    a("s_branch L_P1CHK")
    a.label("L_P1")
    if P["S1"]: a(f"s_sleep {P['S1']}")
    a("buffer_load_dwordx4 v[24:27], v6, s[12:15], 0 offen sc1\nbuffer_load_dwordx4 v[28:31], v6, s[12:15], s29 offen sc1")
    a.label("L_P1CHK")
    a("s_waitcnt vmcnt(0)")
    untag(14, 24, 8, vD)
    spin_tail("L_P1")
    a("s_mov_b64 exec, -1")
    stamp(5)
    for i in range(4): a(f"v_add_f32 v{24+i}, v{24+i}, v{28+i}")
    quad_scatter_sum(24)
    for i in range(4):
        a(f"v_mov_b32_dpp v{28+i}, v24 quad_perm:[{i},{i},{i},{i}] row_mask:0xf bank_mask:0xf")
    a("v_cvt_pk_bf16_f32 v16, v28, v29\nv_cvt_pk_bf16_f32 v17, v30, v31")
    for j in range(8):
        a(f"v_mfma_f32_16x16x32_bf16 v[{32+4*j}:{35+4*j}], v[16:19], v[{vT+4*j}:{vT+4*j+3}], 0")
    a("s_mov_b64 exec, 0xffff")
    for j in range(0, 8, 2):
        a(f"ds_write2_b32 v3, v{32+4*j}, v{36+4*j} offset0:{j} offset1:{j+1}")
    a("s_waitcnt lgkmcnt(0)\ns_barrier")
    a("s_cmp_lg_u32 s3, 0\ns_cbranch_scc1 L_FINAL")
    a("s_mov_b32 exec_lo, -1\ns_mov_b32 exec_hi, 0")
    for w in range(4):
        a(f"ds_read_b128 v[{20+4*w}:{23+4*w}], v{4 if w < 2 else 2} offset:{(w % 2)*RING+4096}")
    for w in range(1, 4):
        a(f"s_waitcnt lgkmcnt({3-w})")
        for i in range(4): a(f"v_add_f32 v{20+i}, v{20+i}, v{20+4*w+i}")
    tag4(20, vD)
    a("buffer_store_dwordx4 v[20:23], v1, s[12:15], 0 offen sc1")
    stamp(6)
    a("s_branch L_EXIT")

    a.label("L_FINAL")
    a("s_cmp_lg_u32 s3, 1\ns_cbranch_scc1 L_EXIT\ns_cmp_lt_u32 s2, 224\ns_cbranch_scc1 L_EXIT")
    a("s_mov_b64 exec, -1")
    final_index()
    a(f"s_lshl_b32 s29, s{sF}, 12\ns_add_u32 s29, s29, {WS_O2}\nv_lshlrev_b32 v6, 4, v0\nv_lshlrev_b32 v7, 2, v0\nv_add_u32 v7, {L_FIN}, v7")
    a("ds_read_b32 v16, v7")
    a("v_lshrrev_b32 v14, 4, v0\nv_lshlrev_b32 v14, 1, v14\nv_lshl_add_u32 v5, v15, 4, v14")
    if P["L2"]:
        a(f"s_lshr_b32 s29, s{sF}, 3\ns_lshl_b32 s29, s29, 15\ns_and_b32 s83, s{sF}, 7\ns_lshl_b32 s83, s83, 6\ns_add_u32 s29, s29, s83\ns_add_u32 s29, s29, {WS_O2}")
        a("v_lshrrev_b32 v6, 2, v0\nv_lshlrev_b32 v6, 9, v6\nv_lshl_add_u32 v6, v15, 4, v6")
    gather("L_P2", 24, 4, 29, 6, 14, vD, P["S2"], 8192 if P["L2"] else 1024)
    stamp(6)
    for i in range(8): a(f"v_add_f32 v{24+i}, v{24+i}, v{32+i}")
    for i in range(4): a(f"v_add_f32 v{24+i}, v{24+i}, v{28+i}")
    quad_scatter_sum(24)
    a("s_waitcnt lgkmcnt(0)")
    a("v_add_f32 v24, v16, v24\nv_cvt_pk_bf16_f32 v24, v24, v24")
    a("s_mov_b32 exec_lo, 0x000f000f\ns_mov_b32 exec_hi, 0x000f000f")
    a("buffer_store_short v24, v5, s[20:23], s82 offen")
    a(f"s_cmp_lg_u32 s2, 224\ns_cbranch_scc1 L_NOE\ns_mov_b64 exec, 1\nv_mov_b32 v24, s{sE}\nv_mov_b32 v5, {WS_E}\nbuffer_store_dword v24, v5, s[12:15], 0 offen")
    a.label("L_NOE")
    if DBG: a("s_waitcnt vmcnt(0)")
    a.label("L_EXIT")
    stamp(8)
    dump_stamps()
    a("s_endpgm")

    a.label("L_HELP")
    srd(12, pWS, WS_BYTES)
    load_epoch()
    a(f"v_mov_b32 v{hA}, -1\nv_mov_b32 v{hA+1}, -1\nv_lshrrev_b32 v7, 4, v0")
    a(f"v_lshlrev_b32 v6, 3, v0\nv_add_u32 v6, {L_ML}, v6\ns_mov_b64 exec, 0x1ffff\nds_write_b64 v6, v[{hA}:{hA+1}]\ns_mov_b64 exec, -1")
    a("s_waitcnt vmcnt(19)")
    vM, vR, vX = 200, 201, 202
    for i in range(4): unpack(hU + 2 * i, hU + 2 * i + 1, hXA + i)
    def allsum(x, t):
        for r in (1, 2, 4, 8): dpp("v_add_f32", x, f"row_ror:{r}")
        rows_allreduce("v_add_f32", x, t)
    a(f"v_add_f32 v{vM}, v{hU}, v{hU+1}")
    for i in range(2, 8): a(f"v_add_f32 v{vM}, v{vM}, v{hU+i}")
    allsum(vM, vX)
    a(f"v_mul_f32 v{vM}, 0x3b000000, v{vM}")
    for i in range(8): a(f"v_sub_f32 v{hU+i}, v{hU+i}, v{vM}")
    a(f"v_mul_f32 v{vR}, v{hU}, v{hU}")
    for i in range(1, 8): a(f"v_fmac_f32 v{vR}, v{hU+i}, v{hU+i}")
    allsum(vR, vX)
    a(f"v_mul_f32 v{vR}, 0x3b000000, v{vR}")
    rnd1(vM); rnd1(vR)
    a(f"v_add_f32 v{vR}, 0x3727c5ac, v{vR}"); rnd1(vR)
    a(f"v_sqrt_f32 v{vR}, v{vR}"); rnd1(vR)
    a(f"v_rcp_f32 v{vR}, v{vR}")

    def normalise(x, n):
        for i in range(n): unpack(hU + 2 * i, hU + 2 * i + 1, x + i)
        for i in range(2 * n): a(f"v_sub_f32 v{hU+i}, v{hU+i}, v{vM}")
        for i in range(n): a(f"v_cvt_pk_bf16_f32 v{x+i}, v{hU+2*i}, v{hU+2*i+1}")
        for i in range(n): unpack(hU + 2 * i, hU + 2 * i + 1, x + i)
        for i in range(2 * n): a(f"v_mul_f32 v{hU+i}, v{hU+i}, v{vR}")
        for i in range(n): a(f"v_cvt_pk_bf16_f32 v{x+i}, v{hU+2*i}, v{hU+2*i+1}")

    def gemv(acc, w, npair, xsrc, tmp, waits=None):
        for p in range(npair):
            if waits: a(f"s_waitcnt vmcnt({waits(p)})")
            ra, rb = w + 8 * p, w + 8 * p + 4
            for q in range(4):
                a(f"v_perm_b32 v{tmp+2*q}, v{rb+q}, v{ra+q}, s{sLO}\nv_perm_b32 v{tmp+2*q+1}, v{rb+q}, v{ra+q}, s{sHI}")
            for j in range(8):
                a(f"v_dot2_f32_bf16 v{acc+j}, v{tmp+j}, {xsrc(p)}, {'0' if p == 0 else f'v{acc+j}'}")

    def publish64(x, soff):
        for j in range(4): a(f"v_permlane32_swap_b32 v{x+j}, v{x+4+j}")
        for j in range(4): a(f"v_add_f32 v{x+j}, v{x+j}, v{x+4+j}")
        for j in range(4): a(f"v_mov_b32 v{x+4+j}, v{x+j}")
        for j in range(4): a(f"v_permlane16_swap_b32 v{x+j}, v{x+4+j}")
        for j in range(4): a(f"v_add_f32 v{x+j}, v{x+j}, v{x+4+j}")
        for j in range(4): dpp("v_add_f32", x + j, "row_ror:8")
        tag4(x, hT)
        a(f"s_mov_b32 exec_lo, 0xff\ns_mov_b32 exec_hi, 0xff\nbuffer_store_dwordx4 v[{x}:{x+3}], v2, s[12:15], s{soff} offen sc1\ns_mov_b64 exec, -1")

    a("s_waitcnt vmcnt(16) lgkmcnt(0)")
    normalise(hXQ, 8)
    make_tags(hT)
    a("v_lshrrev_b32 v2, 5, v0\nv_lshl_add_u32 v2, v2, 7, v4")
    a(f"s_lshl_b32 s29, s{sG}, 13\ns_add_u32 s29, s29, {WS_Q}\ns_lshl_b32 s82, s{sCS}, 8\ns_lshl_b32 s83, s{sCG}, 13\ns_add_u32 s82, s82, s83\ns_add_u32 s82, s82, {WS_Q}")
    gemv(hA, hW, 8, lambda p: f"v{hXQ+p}", hU, lambda p: 14 - 2 * p)
    publish64(hA, 82)
    stamp(1)

    a("s_cmp_ge_u32 s2, 224\ns_cbranch_scc1 L_NOW1")
    srd(4, pW1, 512 * 3584)
    a(f"s_and_b32 s81, s2, 7\ns_mul_i32 s81, s81, {64*3584}\ns_lshr_b32 s83, s2, 3\ns_lshl_b32 s83, s83, 7\ns_add_u32 s81, s81, s83")
    a("v_mul_u32_u24 v3, 28672, v1\nv_add_u32 v3, v3, v4")
    for e in range(8):
        a(f"buffer_load_dwordx4 v[{hW1+4*e}:{hW1+4*e+3}], v3, s[4:7], s81 offen {WNT}")
        if e < 7: a("s_addk_i32 s81, 3584")
    normalise(hXF, 4)
    a(f"s_lshl_b32 s82, s2, 8\ns_add_u32 s82, s82, {WS_H}")
    gemv(hA, hW1, 4, lambda p: f"v{hXF+p}", hU, lambda p: 6 - 2 * p)
    if not P["NOH"]: publish64(hA, 82)
    a.settle()
    a.label("L_NOW1")
    stamp(4)

    a(f"v_lshlrev_b32 v3, 7, v7\nv_add_u32 v3, v3, v4\nv_bfe_u32 v6, v0, 3, 1\nv_lshl_add_u32 v3, v6, 3, v3\nv_add_u32 v3, {L_Q}, v3")
    gather("L_H0", hW, 8, 29, 5, vX, hT, P["QSLEEP"])
    stamp(2)
    for j in range(16): a(f"v_add_f32 v{hW+j}, v{hW+j}, v{hW+16+j}")
    for j in range(8): a(f"v_add_f32 v{hW+j}, v{hW+j}, v{hW+8+j}")
    for j in range(4): a(f"v_cvt_pk_bf16_f32 v{hW+j}, v{hW+2*j}, v{hW+2*j+1}")
    a(f"ds_write_b64 v3, v[{hW}:{hW+1}]\nds_write_b64 v3, v[{hW+2}:{hW+3}] offset:512\ns_waitcnt lgkmcnt(0)")
    stamp(3)
    a("s_barrier")

    a(f"v_and_b32 v3, 15, v0\nv_lshlrev_b32 v6, 3, v3\nv_add_u32 v6, {L_ML}, v6")
    a.label("L_H2")
    a("s_sleep 4\nds_read_b64 v[8:9], v6\ns_waitcnt lgkmcnt(0)\nv_max_u32 v10, v8, v9\nv_cmp_eq_u32 vcc, -1, v10")
    spin_tail("L_H2")
    a("v_mov_b32 v12, v8")
    dpp("v_max_f32", 12, "row_ror:4"); dpp("v_max_f32", 12, "row_ror:8")
    a("v_sub_f32 v13, v8, v12\nv_mul_f32 v13, 0x3fb8aa3b, v13\nv_exp_f32 v13, v13\nv_mul_f32 v13, v13, v9")
    dpp("v_add_f32", 13, "row_ror:4"); dpp("v_add_f32", 13, "row_ror:8")
    a("v_mov_b32 v14, 0\nv_mov_b32 v15, 0")
    tag4(12, hT)
    a(f"s_lshl_b32 s32, s{sG}, {11+P['LM']}\ns_add_u32 s32, s32, {WS_ML}\ns_lshl_b32 s81, s{sS}, {6+P['LM']}\ns_add_u32 s81, s81, s32")
    a("v_lshrrev_b32 v1, 2, v0\nv_lshlrev_b32 v1, 7, v1\nv_and_b32 v2, 3, v0\nv_lshl_add_u32 v1, v2, 4, v1")
    if not P["NOML"]: a("s_mov_b64 exec, 15\nbuffer_store_dwordx4 v[12:15], v5, s[12:15], s81 offen sc1\ns_mov_b64 exec, -1")
    stamp(6)

    remap(P["CM"])
    for j in range(4): a(f"v_mov_b32 v{hW+j}, 0")
    a(f"s_cmp_eq_u32 s{sCG}, 7\ns_cbranch_scc1 L_NOH")
    srd(16, pB1, 3584)
    a(f"s_lshl_b32 s81, s{sCG}, 2\ns_lshr_b32 s82, s{sCS}, 3\ns_add_u32 s81, s81, s82\ns_and_b32 s82, s{sCS}, 4")
    a(f"s_lshl_b32 s29, s81, 11\ns_lshl_b32 s83, s82, 5\ns_add_u32 s29, s29, s83\ns_add_u32 s29, s29, {WS_H}")
    a("s_lshl_b32 s81, s81, 7\ns_lshl_b32 s82, s82, 1\ns_add_u32 s81, s81, s82\nbuffer_load_dwordx2 v[204:205], v4, s[16:19], s81 offen")
    a("v_lshrrev_b32 v3, 3, v0\nv_lshl_add_u32 v3, v3, 8, v4")
    gather("L_H5", hW, 1, 29, 3, vX, hT, P["QSLEEP"])
    for j in range(4): dpp("v_add_f32", hW + j, "row_ror:8")
    for sw in ("v_permlane16_swap_b32", "v_permlane32_swap_b32"):
        for j in range(4): a(f"v_mov_b32 v{hW+4+j}, v{hW+j}")
        for j in range(4): a(f"{sw} v{hW+j}, v{hW+4+j}")
        for j in range(4): a(f"v_add_f32 v{hW+j}, v{hW+j}, v{hW+4+j}")
    def rnd4(x, t):
        a(f"v_cvt_pk_bf16_f32 v{t}, v{x}, v{x+1}\nv_cvt_pk_bf16_f32 v{t+1}, v{x+2}, v{x+3}")
        unpack(x, x + 1, t); unpack(x + 2, x + 3, t + 1)
    rnd4(hW, hW + 8)
    unpack(hW + 4, hW + 5, 204); unpack(hW + 6, hW + 7, 205)
    for j in range(4): a(f"v_add_f32 v{hW+j}, v{hW+j}, v{hW+4+j}")
    rnd4(hW, hW + 8)
    for op in ("v_mul_f32 {t}, {x}, {x}", "v_mul_f32 {t}, {t}, {x}", "v_mul_f32 {t}, 0x3d372713, {t}", "v_add_f32 {t}, {x}, {t}",
               "v_mul_f32 {t}, 0xc0135761, {t}", "v_exp_f32 {t}, {t}", "v_add_f32 {t}, 1.0, {t}", "v_rcp_f32 {t}, {t}", "v_mul_f32 {x}, {x}, {t}",
               "v_cvt_pk_bf16_f32 {x}, {x}, {x}"):
        for j in range(4): a(op.format(x=f"v{hW+j}", t=f"v{hW+4+j}"))
    a.settle()
    a.label("L_NOH")
    a(f"v_lshrrev_b32 v3, 1, v0\nv_lshlrev_b32 v3, 4, v3\nv_and_b32 v6, 1, v0\nv_lshl_add_u32 v3, v6, 1, v3\nv_add_u32 v3, {L_H}, v3\ns_mov_b64 exec, 0xff")
    for j in range(4): a(f"ds_write_b16 v3, v{hW+j} offset:{4*j}")
    a("s_mov_b64 exec, -1")
    stamp(5)

    a("s_cmp_lt_u32 s2, 224\ns_cbranch_scc1 L_NOFIN")
    srd(4, pX, 1024); srd(8, pB2, 1024)
    final_index()
    a("v_and_b32 v3, 3, v0\nv_lshlrev_b32 v3, 4, v3\nv_lshl_add_u32 v3, v7, 1, v3")
    a("buffer_load_ushort v204, v3, s[4:7], s82 offen\nbuffer_load_ushort v206, v3, s[8:11], s82 offen")
    a(f"v_lshlrev_b32 v3, 2, v0\nv_add_u32 v3, {L_FIN}, v3\ns_waitcnt vmcnt(0)")
    a("v_lshlrev_b32 v206, 16, v206\nv_lshlrev_b32 v204, 16, v204\nv_add_f32 v204, v204, v206\nds_write_b32 v3, v204")
    a.settle()
    a.label("L_NOFIN")

    if P["WOT"]:
        srd(16, pWO, 4 << 20)
        a(f"s_lshl_b32 s81, s{sG}, 19\ns_lshr_b32 s82, s{sS}, 2\ns_lshl_b32 s82, s82, 16\ns_add_u32 s81, s81, s82")
        a(f"s_and_b32 s82, s{sS}, 3\ns_lshl_b32 s82, s82, 8\ns_add_u32 s81, s81, s82\nv_mov_b32 v6, 0\nbuffer_load_dword v207, v6, s[16:19], s81 offen")
    a(f"v_mov_b32 v6, {L_GO}")
    a.label("L_H4")
    a("s_sleep 4\nds_read_b32 v10, v6\ns_waitcnt lgkmcnt(0)\nv_cmp_eq_u32 vcc, -1, v10")
    spin_tail("L_H4")
    if not P["NOML"]: gather("L_H3", 12, 2, 32, 1 if P["LM"] else 5, vX, hT, P["QSLEEP"], 1024 << P["LM"])
    a("v_max_f32 v10, v12, v16")
    dpp("v_max_f32", 10, "row_ror:4"); dpp("v_max_f32", 10, "row_ror:8")
    rows_allreduce("v_max_f32", 10, 11)
    a("v_sub_f32 v12, v12, v10\nv_sub_f32 v16, v16, v10\nv_sub_f32 v8, v8, v10")
    a("v_mul_f32 v12, 0x3fb8aa3b, v12\nv_mul_f32 v16, 0x3fb8aa3b, v16\nv_mul_f32 v8, 0x3fb8aa3b, v8")
    a("v_exp_f32 v12, v12\nv_exp_f32 v16, v16\nv_exp_f32 v8, v8")
    a("v_mul_f32 v12, v12, v13\nv_fmac_f32 v12, v16, v17")
    dpp("v_add_f32", 12, "row_ror:4"); dpp("v_add_f32", 12, "row_ror:8")
    rows_allreduce("v_add_f32", 12, 11)
    a("v_rcp_f32 v12, v12\nv_mul_f32 v8, v8, v12")
    a(f"v_and_b32 v6, 3, v0\nv_lshlrev_b32 v6, 4, v6\nv_and_b32 v9, 12, v0\nv_add3_u32 v6, v6, v9, 0\nv_add_u32 v6, {L_FAC}, v6")
    a("s_mov_b64 exec, 0xffff\nds_write_b32 v6, v8\ns_waitcnt lgkmcnt(0)")
    stamp(7)
    a("s_branch L_EXIT")

    if CD:
        CP, LS, GL = P["CP"], P["CST"], P["CX"] == 5
        G6 = P["CX"] == 6
        a.label("L_CTRL")
        a(f"v_lshlrev_b32 v1, 4, v0\nv_add_u32 v1, {L_PR}, v1")
        for i in range(4): a(f"v_mov_b32 v{4+i}, 0")
        a("ds_write_b128 v1, v[4:7]\nds_write_b128 v1, v[4:7] offset:1024")
        a("s_waitcnt lgkmcnt(0)")
        srd(12, pWS, WS_BYTES)
        load_epoch()
        a(f"s_mul_i32 s81, s{sG}, {LS}\ns_add_u32 s81, s81, {WS_PR}\nv_lshl_add_u32 v2, v0, 2, s81\nv_mov_b32 v10, {4*R - 2*CP}")
        a(f"s_mov_b32 exec_lo, 0\nv_and_b32 v2, 7, v0\nv_mul_u32_u24 v2, {LS}, v2\nv_add_u32 v2, {WS_PR + 8*LS}, v2\nv_mov_b32 v10, 0\ns_mov_b32 exec_lo, -1")
        a(f"s_lshl_b64 s[16:17], 1, s{sS}\ns_lshl_b32 s21, 1, s{sG}\ns_andn2_b32 s22, {255 if GL else 0}, s21")
        a(f"s_lshl_b32 s81, s{sG}, 2\ns_xor_b32 s81, s81, s{sS}\ns_and_b32 s81, s81, {P['CM5']}\ns_cselect_b32 s21, 0, s21")
        a(f"s_lshl_b32 s81, s{sS}, 3\ns_add_u32 s81, s81, s{sG}\ns_mul_i32 s81, s81, {4*CP}\ns_lshr_b32 s81, s81, 8\ns_add_u32 s26, s81, {4*R}")
        if G6:
            a(f"v_add_u32 v11, {8*LS}, v2\ns_mov_b32 exec_lo, 0\nv_mov_b32 v11, v2\ns_mul_i32 s81, s{sG}, {LS}\ns_add_u32 s81, s81, {WS_PR + 128}\nv_mov_b32 v2, s81\ns_mov_b32 exec_lo, -1")
            a(f"s_lshl_b32 s21, 1, s{sG}\ns_andn2_b32 s21, 255, s21\ns_mov_b32 s22, 1")
            a(f"s_lshl_b32 s81, s{sG}, 2\ns_sub_u32 s23, s{sS}, s81\ns_and_b32 s23, s23, 31\ns_mul_i32 s23, s23, {P['CK']}")
        a(f"s_bitcmp0_b32 s{sG}, 0\ns_cselect_b32 s20, {P['CC'] + P['CB']}, {P['CC']}")
        a(f"s_waitcnt lgkmcnt(0)\ns_add_u32 s{sE}, s{sE}, 0x9b35e3c1\ns_lshl_b32 s{sE}, s{sE}, 10\ns_movk_i32 s18, 0x400\ns_not_b32 s19, s{sE}")
        a("s_barrier")
        a.label("L_C0")
        a(f"s_sleep {P['CSL']}\nds_read_b32 v3, v1\ns_sub_u32 s{sSPIN}, s{sSPIN}, 1\ns_cbranch_scc1 L_EXIT\ns_waitcnt lgkmcnt(0)")
        a("v_readlane_b32 s8, v3, 0\nv_readlane_b32 s9, v3, 16\nv_readlane_b32 s10, v3, 32\nv_readlane_b32 s11, v3, 48")
        a("s_add_u32 s8, s8, s9\ns_add_u32 s10, s10, s11\ns_add_u32 s8, s8, s10\ns_cmp_lt_u32 s8, s26\ns_cbranch_scc1 L_C0")
        a(f"s_add_u32 s26, s26, {4*CP}\ns_or_b32 s9, s8, s{sE}\nv_mov_b32 v9, s9\nv_mov_b32 v4, s19")
        a(f"s_mov_b32 exec_hi, s22\nbuffer_load_dword v4, v2, s[12:15], 0 offen {P['CLP']}")
        a(f"s_mov_b64 exec, s[16:17]\nbuffer_store_dword v9, v2, s[12:15], 0 offen {P['CSP']}\ns_mov_b64 exec, -1")
        a(f"v_lshlrev_b32 v5, 2, v3\nv_add_u32 v3, s20, v3\ns_waitcnt vmcnt(1)")
        a(f"v_xor_b32 v4, s{sE}, v4\nv_cmp_gt_u32 vcc, s18, v4\nv_cndmask_b32 v4, v10, v4, vcc")
        for r in (1, 2, 4, 8): dpp("v_add_u32", 4, f"row_ror:{r}")
        a("v_readlane_b32 s8, v4, 0\nv_readlane_b32 s9, v4, 16\nv_readlane_b32 s10, v4, 32")
        a(f"s_add_u32 s8, s8, s9\ns_lshr_b32 s8, s8, 5\ns_add_u32 s8, s8, {2*CP}")
        if GL:
            a(f"s_min_u32 s9, s8, 0x3ff\ns_or_b32 s9, s9, s{sE}\nv_mov_b32 v9, s9")
            a(f"s_mov_b32 exec_lo, 0\ns_mov_b32 exec_hi, s21\ns_cbranch_execz L_C1\nbuffer_store_dword v9, v2, s[12:15], 0 offen {P['CGP']}")
            a.label("L_C1")
            a("s_mov_b64 exec, -1\ns_bcnt1_i32_b32 s11, vcc_hi")
            a(f"s_sub_u32 s9, {P['CR']}, s8\ns_mul_i32 s9, s9, s11\ns_add_u32 s9, s9, s10\ns_ashr_i32 s9, s9, {P['CW']}\ns_add_u32 s8, s8, s9")
        if G6:
            a("s_sub_u32 s10, s10, 0x200\ns_cmp_eq_u32 vcc_hi, 0\ns_cselect_b32 s10, 0, s10")
            a("s_sub_u32 s23, s23, 1\ns_cbranch_scc0 L_C1")
            a(f"s_min_u32 s9, s8, 0x3ff\ns_or_b32 s9, s9, s{sE}\nv_mov_b32 v9, s9\nv_mov_b32 v4, s19")
            a(f"s_mov_b32 exec_lo, 0\ns_mov_b32 exec_hi, s21\nbuffer_load_dword v4, v11, s[12:15], 0 offen {P['CGL']}")
            a(f"s_mov_b32 exec_lo, -1\ns_mov_b32 exec_hi, 0\nbuffer_store_dword v9, v11, s[12:15], 0 offen {P['CGP']}\ns_mov_b64 exec, -1\ns_waitcnt vmcnt(1)")
            a(f"v_xor_b32 v4, s{sE}, v4\nv_cmp_gt_u32 vcc, s18, v4\nv_cndmask_b32 v4, v10, v4, vcc")
            for r in (1, 2, 4, 8): dpp("v_add_u32", 4, f"row_ror:{r}")
            a("v_readlane_b32 s10, v4, 32\ns_bcnt1_i32_b32 s11, vcc_hi")
            a(f"s_sub_u32 s9, {P['CR']}, s8\ns_mul_i32 s9, s9, s11\ns_add_u32 s9, s9, s10\ns_ashr_i32 s10, s9, {P['CW']}")
            a(f"s_add_u32 s9, s10, 0x200\ns_and_b32 s9, s9, 0x3ff\ns_or_b32 s9, s9, s{sE}\nv_mov_b32 v9, s9")
            a("s_mov_b32 exec_lo, 0\ns_mov_b32 exec_hi, 1\nbuffer_store_dword v9, v2, s[12:15], 0 offen\ns_mov_b64 exec, -1")
            a.label("L_C1")
            a("s_add_u32 s8, s8, s10")
        a(f"v_sub_u32 v5, s8, v5\nv_mul_i32_i24 v5, {P['CG']}, v5\nv_ashrrev_i32 v5, 2, v5\nv_add_u32 v4, v5, v3")
        a("v_mov_b32 v5, v4\nv_mov_b32 v6, v4\nv_mov_b32 v7, v4\nds_write_b128 v1, v[4:7] offset:1024")
        a(f"s_cmp_lt_u32 s26, {4*P['CE']}\ns_cbranch_scc1 L_C0\ns_waitcnt lgkmcnt(0)\ns_branch L_EXIT")

    a.raw(f""".section .rodata,"a"
.p2align 6
.amdhsa_kernel {NAME}_kernel
  .amdhsa_next_free_vgpr 256
  .amdhsa_next_free_sgpr 102
  .amdhsa_accum_offset 256
  .amdhsa_group_segment_fixed_size 0
  .amdhsa_kernarg_size 104
  .amdhsa_user_sgpr_count 2
  .amdhsa_user_sgpr_kernarg_segment_ptr 1
  .amdhsa_system_sgpr_workgroup_id_x 1
  .amdhsa_float_denorm_mode_32 3
.end_amdhsa_kernel""")
    return a.text(), LDS, forced


if __name__ == "__main__":
    kw = {}
    out = f"cdna_kernels/{NAME}.s"
    for arg in sys.argv[1:]:
        k, v = arg.split("=")
        if k == "out": out = v
        else: kw[k] = int(v) if v.lstrip("-").isdigit() else v
    text, lds, forced = gen(**kw)
    open(out, "w").write(text)
    print("wrote", out, len(text), "bytes, lds", lds, "forced", forced)
```

```python
import sys
from asm import Asm

NAME = "parallel_sum__gqa_block_cached__dense_activation_gelu__decode"

DEF = dict(D=5, R=36, NP=0, NV=32, ROT=16, NT="nt", DBG=0, BUD=200, WNT="nt", NORND=0, MLPOS=48, QSLEEP=8, MAP="x", PWG=-1, PST=0, S1=0, S2=0, DE=0, DEN=0, WOP=0, WOT=0, NOWO=0, NOTAIL=0, CM=10, QM=1, FM=2, AD=0, A0=150, A1=143, AB=36, CD=7, CP=16, CN=4, CG=3, CC=6, CE=240, CSL=2, CST=4224, CX=4, L1=1, L2=1, LM=1, LF=0, DP="", CSP="", CLP="nt", CB=0, CM5=31, CGP="sc1", CR=56, CW=3, CK=1, CGL="sc1", NOF=0, NOML=0, NOH=0, WOL=1, P1S="sc1", P1L="sc1", P2S="sc1", P2L="sc1", DI=0, DIN=0, W1L=0, DW=5)

WS_O1, WS_O2, WS_F, WS_ML, WS_E, WS_Q, WS_H, WS_DBG = 0, 512 << 10, 640 << 10, 1088 << 10, 1120 << 10, 1280 << 10, 1344 << 10, 2 << 20
WS_PR = 1536 << 10
WS_BYTES = 4 << 20
FSTRIDE = 224 * 64
SLOT = 1040
SPIN = 400000


def gen(**kw):
    P = dict(DEF); P.update(kw)
    D, R, NP, NV, ROT, NT, DBG, BUD, WNT = (P[k] for k in ("D", "R", "NP", "NV", "ROT", "NT", "DBG", "BUD", "WNT"))
    RING = R * SLOT
    L_Q = 4 * RING
    L_ML, L_GO, L_FAC, L_FIN = L_Q + 1024, L_Q + 1024 + 128, L_Q + 1024 + 192, L_Q + 1024 + 256
    L_H = L_FIN + 512
    L_PR = L_H + 64
    CD = P["CD"]
    LDS = max(L_PR + (2048 if CD else 0), 84 << 10)
    a = Asm()
    hdr = open(f"cdna_kernels/{NAME}.s.ref").read().split("; Override")[0]
    a.raw(hdr.rstrip())
    a.raw(f"; @launch grid=(256,1,1) block=({384 if CD else 320},1,1) lds={LDS}")
    a.raw('.amdgcn_target "amdgcn-amd-amdhsa--gfx950"')
    a.raw(f".text\n.globl {NAME}_kernel\n.p2align 8\n.type {NAME}_kernel,@function\n{NAME}_kernel:")

    pX, pK, pV, pWQ, pWO, pW1, pB1, pW2, pB2, pOUT, pDBG, pWS = 36, 38, 40, 42, 44, 48, 50, 52, 54, 56, 58, 60
    sG, sS, sKP, sVP, sMSK, sLB, sLO, sHI, sSPIN = 62, 63, 64, 65, 66, 68, 69, 70, 80
    sCLS, sE = 72, 28
    sCG, sCS = 33, 34

    def remap(mode):
        if mode < 8: a(f"s_add_u32 s{sCG}, s{sG}, {mode}\ns_and_b32 s{sCG}, s{sCG}, 7\ns_mov_b32 s{sCS}, s{sS}")
        elif mode == 8: a(f"s_lshr_b32 s{sCG}, s2, 5\ns_and_b32 s{sCS}, s2, 31")
        elif mode == 9: a(f"s_and_b32 s{sCG}, s{sS}, 3\ns_add_u32 s{sCG}, s{sCG}, s{sG}\ns_add_u32 s{sCG}, s{sCG}, 1\ns_and_b32 s{sCG}, s{sCG}, 7\ns_mov_b32 s{sCS}, s{sS}")

        elif mode == 10:
            a(f"s_lshr_b32 s{sCG}, s{sS}, 3\ns_lshl_b32 s{sCG}, s{sCG}, 1\ns_andn2_b32 s{sCS}, 1, s{sG}\ns_add_u32 s{sCG}, s{sCG}, s{sCS}")
            a(f"s_and_b32 s{sCS}, s{sS}, 7\ns_lshl_b32 s{sCS}, s{sCS}, 3\ns_add_u32 s{sCS}, s{sCS}, s{sG}\ns_lshr_b32 s{sCS}, s{sCS}, 1")

    sF = 35
    def final_index():
        if P["FM"] == 0: a(f"s_and_b32 s{sF}, s2, 31")
        else:
            a(f"s_add_u32 s{sF}, s2, {2*P['FM']}\ns_and_b32 s{sF}, s{sF}, 7\ns_lshl_b32 s{sF}, s{sF}, 2\ns_bfe_u32 s82, s2, 0x20003\ns_add_u32 s{sF}, s{sF}, s82")
        a(f"s_lshr_b32 s82, s{sF}, 1\ns_lshl_b32 s82, s82, 6\ns_and_b32 s83, s{sF}, 1\ns_lshl_b32 s83, s83, 3\ns_add_u32 s82, s82, s83")

    def load_epoch():
        a(f"s_add_u32 s30, s{pWS}, {WS_E}\ns_addc_u32 s31, s{pWS+1}, 0\ns_load_dword s{sE}, s[30:31], 0")

    def make_tags(vt):
        a(f"s_add_u32 s{sE}, s{sE}, 0x9b35e3c1\nv_and_b32 v{vt+3}, 1, v0\nv_lshlrev_b32 v{vt+3}, 4, v{vt+3}\nv_lshrrev_b32 v{vt+3}, v{vt+3}, s{sE}")
        for i in range(4): a(f"v_bfe_u32 v{vt+i}, v{vt+3}, {4*i}, 4")

    def tag4(x, vt):
        for i in range(4): a(f"v_and_or_b32 v{x+i}, v{x+i}, -16, v{vt+i}")

    def untag(t, x, n, vt):
        for i in range(n): a(f"v_xor_b32 v{x+i}, v{vt + i % 4}, v{x+i}")
        a(f"v_or3_b32 v{t}, v{x}, v{x+1}, v{x+2}")
        for i in range(3, n - 1, 2): a(f"v_or3_b32 v{t}, v{t}, v{x+i}, v{x+i+1}")
        a(f"v_or_b32 v{t}, v{t}, v{x+n-1}\nv_and_b32 v{t}, 15, v{t}\nv_cmp_ne_u32 vcc, 0, v{t}\ns_wqm_b64 exec, vcc")

    def gather(label, dst, n, sbase, vaddr, t, vt, sleep=0, stride=1024, pol="sc1"):
        if sleep:
            a(f"s_branch {label}A")
            a.label(label)
            a(f"s_sleep {sleep}")
            a.label(label + "A")
        else:
            a.label(label)
        per = max(1, 4096 // stride)
        for i in range(n):
            if i % per == 0 and i: a(f"s_add_u32 s81, s{sbase}, {stride*i}")
            a(f"buffer_load_dwordx4 v[{dst+4*i}:{dst+4*i+3}], v{vaddr}, s[12:15], s{81 if i >= per else sbase} offen offset:{stride*(i % per)} {pol}")
        a("s_waitcnt vmcnt(0)")
        untag(t, dst, 4 * n, vt)
        spin_tail(label)
        a("s_mov_b64 exec, -1")

    def srd(d, p, nbytes):
        a(f"s_mov_b32 s{d}, s{p}\ns_mov_b32 s{d+1}, s{p+1}\ns_mov_b32 s{d+2}, {nbytes}\ns_mov_b32 s{d+3}, 0x20000")

    def stamp(i):
        if DBG: a(f"s_memrealtime s[{84+2*i}:{85+2*i}]")

    def dump_stamps():
        if not DBG: return
        if P["PWG"] >= 0:
            a(f"s_waitcnt lgkmcnt(0)\ns_cmp_lg_u32 s2, {P['PWG']}\ns_cbranch_scc1 L_PROBE_END\ns_cmp_lg_u32 s3, 1\ns_cbranch_scc1 L_PROBE_END")
            a(f"s_add_u32 s81, s{84+2*P['PST']}, 10000")
            a.label("L_PROBE")
            a("s_memrealtime s[82:83]\ns_waitcnt lgkmcnt(0)\ns_sub_u32 s82, s82, s81\ns_cmp_lt_i32 s82, 0\ns_cbranch_scc1 L_PROBE")
            a.label("L_PROBE_END")
            return
        a("s_mov_b64 exec, -1\ns_waitcnt lgkmcnt(0)")
        a(f"s_lshl_b32 s81, s2, 3\ns_add_u32 s81, s81, s3\ns_lshl_b32 s81, s81, 6\ns_add_u32 s81, s81, {WS_DBG}")
        a("s_getreg_b32 s82, hwreg(HW_REG_XCC_ID)\nv_mov_b32 v1, 0\ns_mov_b64 exec, 1")
        for i in range(9):
            a(f"v_mov_b32 v2, s{84+2*i}\nbuffer_store_dword v2, v1, s[12:15], s81 offen offset:{4*i}")
        a("v_mov_b32 v2, s82\nbuffer_store_dword v2, v1, s[12:15], s81 offen offset:60\ns_waitcnt vmcnt(0)")

    def unpack(lo, hi, src):
        a(f"v_lshlrev_b32 v{lo}, 16, v{src}\nv_and_b32 v{hi}, 0xffff0000, v{src}")

    def rnd1(x):
        a(f"v_cvt_pk_bf16_f32 v{x}, v{x}, v{x}\nv_and_b32 v{x}, 0xffff0000, v{x}")

    def dpp(op, x, ctl):
        a(f"{op}_dpp v{x}, v{x}, v{x} {ctl} row_mask:0xf bank_mask:0xf")

    def rows_allreduce(op, x, t):
        for sw in ("v_permlane16_swap_b32", "v_permlane32_swap_b32"):
            a(f"v_mov_b32 v{t}, v{x}\n{sw} v{t}, v{x}\n{op} v{x}, v{t}, v{x}")

    def quad_scatter_sum(x):
        a(f"v_permlane32_swap_b32 v{x}, v{x+2}\nv_permlane32_swap_b32 v{x+1}, v{x+3}")
        a(f"v_add_f32 v{x}, v{x}, v{x+2}\nv_add_f32 v{x+1}, v{x+1}, v{x+3}")
        a(f"v_permlane16_swap_b32 v{x}, v{x+1}\nv_add_f32 v{x}, v{x}, v{x+1}")
        dpp("v_add_f32", x, "row_ror:4"); dpp("v_add_f32", x, "row_ror:8")

    def umax_tree(t, rs):
        rs = list(rs)
        a(f"v_max3_u32 v{t}, v{rs[0]}, v{rs[1]}, v{rs[2 % len(rs)]}")
        rs = rs[3:]
        while rs:
            a(f"v_max3_u32 v{t}, v{t}, v{rs[0]}, v{rs[1 % len(rs)]}"); rs = rs[2:]

    def spin_tail(label):
        a(f"s_sub_u32 s{sSPIN}, s{sSPIN}, 1\ns_cbranch_scc1 L_EXIT\ns_cbranch_vccnz {label}")

    stamp(0)
    a("s_load_dwordx16 s[36:51], s[0:1], 0\ns_load_dwordx8 s[52:59], s[0:1], 64\ns_load_dwordx2 s[60:61], s[0:1], 96")
    a("s_cmp_lt_u32 s2, 0x100\ns_cbranch_scc1 L_LIVE\ns_waitcnt lgkmcnt(0)\ns_endpgm")
    a.label("L_LIVE")
    a("v_lshrrev_b32 v1, 6, v0\nv_and_b32 v0, 63, v0")
    if P["MAP"] == "x": a(f"s_and_b32 s{sG}, s2, 7\ns_lshr_b32 s{sS}, s2, 3")
    else: a(f"s_and_b32 s{sS}, s2, 31\ns_lshr_b32 s{sG}, s2, 5")
    a("v_readfirstlane_b32 s3, v1")
    a(f"s_mov_b32 s{sSPIN}, {SPIN}\ns_mov_b32 s{sLO}, 0x05040100\ns_mov_b32 s{sHI}, 0x07060302")
    a("s_cmp_lt_u32 s3, 4\ns_cbranch_scc1 L_STREAM")
    if CD: a("s_cmp_eq_u32 s3, 5\ns_cbranch_scc1 L_CTRL")

    hXA, hXQ, hXF, hW, hW1, hW2, hT, hA, hU = 8, 12, 20, 32, 96, 128, 24, 160, 168
    a("v_lshlrev_b32 v5, 4, v0\nv_lshrrev_b32 v1, 3, v0\nv_lshlrev_b32 v2, 5, v1\nv_and_b32 v4, 7, v0\nv_lshlrev_b32 v4, 4, v4\nv_lshl_add_u32 v3, v1, 17, v4")
    remap(P["QM"])
    a(f"s_lshr_b32 s83, s{sCS}, 3\ns_lshl_b32 s81, s83, 20\ns_lshl_b32 s82, s{sCG}, 10\ns_add_u32 s81, s81, s82\ns_and_b32 s82, s{sCS}, 7\ns_lshl_b32 s82, s82, 7\ns_add_u32 s81, s81, s82\ns_lshl_b32 s82, s83, 8")
    a("s_waitcnt lgkmcnt(0)")
    srd(4, pX, 1024); srd(16, pWQ, 4 << 20)
    a(f"buffer_load_dwordx4 v[{hXA}:{hXA+3}], v5, s[4:7], 0 offen")
    a(f"buffer_load_dwordx4 v[{hXQ}:{hXQ+3}], v2, s[4:7], s82 offen\nbuffer_load_dwordx4 v[{hXQ+4}:{hXQ+7}], v2, s[4:7], s82 offen offset:16")
    a(f"s_and_b32 s82, s2, 7\ns_lshl_b32 s82, s82, 7\nv_lshlrev_b32 v2, 4, v1\nbuffer_load_dwordx4 v[{hXF}:{hXF+3}], v2, s[4:7], s82 offen")
    for i in range(16):
        a(f"buffer_load_dwordx4 v[{hW+4*i}:{hW+4*i+3}], v3, s[16:19], s81 offen {WNT}")
        if i < 15: a("s_addk_i32 s81, 0x2000")
    a("s_branch L_HELP")

    vKO, vVO, vRD, vMK, vMAX, vL, vS, vA, vQ, vACC, vD, vT0, vT, vV = 1, 2, 3, 8, 12, 13, 16, 48, 64, 64, 80, 84, 88, 120
    assert vV + 4 * NV <= 256
    a.label("L_STREAM")
    a("s_setprio 2")
    a(f"s_lshl_b32 s81, s{sG}, 24\ns_lshl_b32 s82, s{sS}, 19\ns_add_u32 s81, s81, s82\ns_lshl_b32 s82, s3, 10\ns_add_u32 s81, s81, s82")
    a(f"v_lshlrev_b32 v{vVO}, 4, v0\nv_lshrrev_b32 v7, 4, v0\nv_lshlrev_b32 v14, 6, v7\nv_xor_b32 v{vKO}, v14, v{vVO}")
    a(f"v_add_u32 v{vVO}, s81, v{vVO}\nv_add_u32 v{vKO}, s81, v{vKO}")
    a(f"s_mov_b32 s{sMSK}, 0x7ffff\ns_mul_i32 s{sKP}, s2, {ROT*1024}\ns_and_b32 s{sKP}, s{sKP}, s{sMSK}\ns_mov_b32 s{sVP}, s{sKP}")
    a(f"s_mul_i32 s{sLB}, s3, {RING}")
    a("s_waitcnt lgkmcnt(0)")
    srd(8, pV, 128 << 20); srd(4, pK, 128 << 20)

    seq = [("V", i) for i in range(NP)] + [("K", i) for i in range(128)] + [("V", i) for i in range(NP, 128)]
    WOP = P["WOP"]
    if WOP:
        assert vV + 4 * NV <= 240
        seq = seq[:len(seq) - WOP] + [("W", i) for i in range(4)] + seq[len(seq) - WOP:]
    pos = {x: n for n, x in enumerate(seq)}
    st = dict(rd=0, mf=0, sel=0, rnd=0, sm=0, perm=0, ap=0, pv=0, q=False, landed=-1, setup=0)
    vslot = lambda vi: vV + 4 * (vi % NV)

    def setup_pieces():
        def p0():
            a("v_and_b32 v14, 3, v0\nv_bfe_u32 v15, v0, 2, 2")
            a(f"v_mul_u32_u24 v{vRD}, {SLOT}, v14\nv_lshl_add_u32 v{vRD}, v15, 8, v{vRD}\nv_lshl_add_u32 v{vRD}, v7, 4, v{vRD}\nv_add_u32 v{vRD}, s{sLB}, v{vRD}")
            for ks in (3, 2, 1, 0):
                a(f"v_xor_b32 v{vT0}, {ks}, v15\nv_lshl_add_u32 v{vRD+ks}, v{vT0}, 6, v{vRD}")
        def p1():
            for i in range(4):
                m = 0x11111111 << i
                a(f"s_mov_b32 s{sCLS+2*i}, {hex(m)}\ns_mov_b32 s{sCLS+2*i+1}, {hex(m)}")
                a(f"v_cndmask_b32 v{vMK+i}, 0, -1, s[{sCLS+2*i}:{sCLS+2*i+1}]")
            a(f"v_mov_b32 v{vMAX}, 0xff800000\nv_mov_b32 v{vL}, 0")
        def p2():
            srd(12, pWS, WS_BYTES); srd(16, pWO, 4 << 20); srd(20, pOUT, 1024)
            load_epoch()
            a(f"v_lshlrev_b32 v15, 8, v15\nv_lshl_add_u32 v15, v7, 4, v15\nv_add_u32 v15, {L_Q}, v15")
            if CD: a(f"s_lshl_b32 s81, s3, 8\ns_add_u32 s81, s81, {L_PR}\nv_lshl_add_u32 v248, v0, 2, s81")
        return [p0, p1, p2]
    setup = setup_pieces()

    def tile_dst(T):
        b = T // 2
        return (b % 4), vS + 8 * (b // 4) + 4 * (T % 2)

    def k_sel(T):
        t, dst = tile_dst(T)
        if t == 0: return 0
        for i in range(4):
            a(f"v_cndmask_b32 v{dst+i}, v{dst+i}, v{vD+i}, s[{sCLS+2*t}:{sCLS+2*t+1}]")
        return 16

    def k_mfma(T):
        t, dst = tile_dst(T)
        d = dst if t == 0 else vD
        a("s_waitcnt lgkmcnt(0)")
        for ks in range(4):
            c = "0" if ks == 0 else f"v[{d}:{d+3}]"
            a(f"v_mfma_f32_16x16x32_bf16 v[{d}:{d+3}], v[{vA+4*ks}:{vA+4*ks+3}], v[{vQ+4*ks}:{vQ+4*ks+3}], {c}")
        return 64

    def k_read(T):
        off = ((4 * T) % R) * SLOT
        for ks in range(4):
            a(f"ds_read_b128 v[{vA+4*ks}:{vA+4*ks+3}], v{vRD+ks} offset:{off}")
        return 24

    def k_round(j):
        x = vS + 4 * j
        if P["NORND"]:
            for i in range(4): a(f"v_mul_f32 v{x+i}, 0x3db504f3, v{x+i}")
            a(f"v_max3_f32 v{vMAX}, v{vMAX}, v{x}, v{x+1}\nv_max3_f32 v{vMAX}, v{vMAX}, v{x+2}, v{x+3}")
            return 30
        a(f"v_cvt_pk_bf16_f32 v{vT0}, v{x}, v{x+1}\nv_cvt_pk_bf16_f32 v{vT0+1}, v{x+2}, v{x+3}")
        unpack(x, x + 1, vT0); unpack(x + 2, x + 3, vT0 + 1)
        for i in range(4): a(f"v_mul_f32 v{x+i}, 0x3db504f3, v{x+i}")
        a(f"v_cvt_pk_bf16_f32 v{vT0}, v{x}, v{x+1}\nv_cvt_pk_bf16_f32 v{vT0+1}, v{x+2}, v{x+3}")
        unpack(x, x + 1, vT0); unpack(x + 2, x + 3, vT0 + 1)
        a(f"v_max3_f32 v{vMAX}, v{vMAX}, v{x}, v{x+1}\nv_max3_f32 v{vMAX}, v{vMAX}, v{x+2}, v{x+3}")
        return 80

    def softmax(j):
        if j == 0:
            dpp("v_max_f32", vMAX, "quad_perm:[1,0,3,2]"); dpp("v_max_f32", vMAX, "quad_perm:[2,3,0,1]")
            rows_allreduce("v_max_f32", vMAX, vT0)
            for i in range(8): a(f"v_mov_b32 v{vACC+i}, 0")
            stamp(2)
            return 100
        if j <= 8:
            x = vS + 4 * (j - 1)
            for i in range(4): a(f"v_sub_f32 v{x+i}, v{x+i}, v{vMAX}")
            for i in range(4): a(f"v_mul_f32 v{x+i}, 0x3fb8aa3b, v{x+i}")
            for i in range(4): a(f"v_exp_f32 v{x+i}, v{x+i}")
            a(f"v_add_f32 v{vT0}, v{x}, v{x+1}\nv_add_f32 v{vT0+1}, v{x+2}, v{x+3}")
            dst = vS + 8 * ((j - 1) // 2) + 2 * ((j - 1) % 2)
            a(f"v_cvt_pk_bf16_f32 v{dst}, v{x}, v{x+1}\nv_cvt_pk_bf16_f32 v{dst+1}, v{x+2}, v{x+3}")
            a(f"v_add_f32 v{vL}, v{vL}, v{vT0}\nv_add_f32 v{vL}, v{vL}, v{vT0+1}")
            return 100
        dpp("v_add_f32", vL, "quad_perm:[1,0,3,2]"); dpp("v_add_f32", vL, "quad_perm:[2,3,0,1]")
        rows_allreduce("v_add_f32", vL, vT0)
        a(f"v_min_u32 v{vMAX}, -2, v{vMAX}\nv_min_u32 v{vL}, -2, v{vL}")
        a(f"s_lshl_b32 s81, s3, 5\ns_add_u32 s81, s81, {L_ML}\nv_lshl_add_u32 v{vT0}, v0, 1, s81")
        a(f"s_mov_b64 exec, 0x1111\nds_write_b64 v{vT0}, v[{vMAX}:{vMAX+1}]\ns_mov_b64 exec, -1")
        return 100

    def v_perm(pr):
        ra, rb, p = vslot(2 * pr), vslot(2 * pr + 1), pr % 4
        for q in range(4):
            a(f"v_perm_b32 v{vT+8*q+p}, v{rb+q}, v{ra+q}, s{sLO}\nv_perm_b32 v{vT+8*q+4+p}, v{rb+q}, v{ra+q}, s{sHI}")
        return 32

    def a_prep(b):
        t, src = b % 4, vS + 8 * (b // 4)
        for i in range(4):
            for p in range(4):
                a(f"v_and_b32_dpp v{vA+4*i+p}, v{src+p}, v{vMK+i} quad_perm:[{t},{t},{t},{t}] row_mask:0xf bank_mask:0xf")
        return 64

    def pv_mfma(h):
        jj = h % 2
        for i in range(4):
            j = 4 * jj + i
            d = f"v[{vACC+4*jj}:{vACC+4*jj+3}]"
            a(f"v_mfma_f32_16x16x32_bf16 {d}, v[{vA+4*i}:{vA+4*i+3}], v[{vT+4*j}:{vT+4*j+3}], {d}")
        return 64

    def work(budget):
        spent = 0
        landed = lambda x: pos[x] <= st["landed"]
        if st["setup"] < len(setup):
            setup[st["setup"]](); st["setup"] += 1
            return 60
        if st["sel"] < st["mf"]:
            spent += k_sel(st["sel"]) + 1; st["sel"] += 1
        if st["q"] and st["mf"] < st["rd"]:
            spent += k_mfma(st["mf"]); st["mf"] += 1
        if st["rd"] < 32 and st["rd"] == st["mf"] and landed(("K", 4 * st["rd"] + 3)):
            spent += k_read(st["rd"]); st["rd"] += 1
        while spent < budget:
            if st["rnd"] < 8 and st["sel"] >= 8 * (st["rnd"] // 2) + 7 + st["rnd"] % 2:
                spent += k_round(st["rnd"]); st["rnd"] += 1
            elif st["pv"] < 32 and st["ap"] > st["pv"] // 2 and st["perm"] >= 4 * (st["pv"] // 2 + 1):
                spent += pv_mfma(st["pv"]); st["pv"] += 1
            elif st["ap"] < 16 and st["pv"] == 2 * st["ap"] and st["sm"] >= 3 + 2 * (st["ap"] // 4):
                spent += a_prep(st["ap"]); st["ap"] += 1
            elif st["perm"] < 64 and st["pv"] >= 2 * (st["perm"] // 4) and landed(("V", 2 * st["perm"] + 1)):
                spent += v_perm(st["perm"]); st["perm"] += 1
            elif st["rnd"] == 8 and st["sm"] < 10:
                spent += softmax(st["sm"]); st["sm"] += 1
            else:
                break
        return spent

    forced = 0
    for n, (kind, i) in enumerate(seq):
        if kind == "W":
            if n - D > st["landed"]:
                a(f"s_waitcnt vmcnt({D-1})"); st["landed"] = n - D
            a(f"s_mov_b32 s81, {4096*i}\nbuffer_load_dwordx4 v[{240+4*i}:{243+4*i}], v{vKO}, s[16:19], s81 offen {WNT}")
            work(BUD)
            continue
        free = (lambda: i < R or (i - R) // 4 < st["mf"]) if kind == "K" else (lambda: i < NV or (i - NV) // 2 < st["perm"])
        while not free():
            assert work(1) > 0, (n, kind, i, st)
            forced += 1
        sp = sKP if kind == "K" else sVP
        if kind == "K":
            a(f"s_mov_b32 m0, s{sLB}" if i % R == 0 else f"s_addk_i32 m0, {SLOT}")
        Dn = P["DE"] if n >= len(seq) - P["DEN"] else D
        if n < P["DIN"]: Dn = P["DI"]
        if P["DP"]: Dn = int(str(P["DP"])[n % len(str(P["DP"]))])
        if CD and n >= R:
            if n % 4 == 0: a(f"v_mov_b32 v249, {n}\nds_write_b32 v248, v249\nds_read_b32 v250, v248 offset:1024")
            if n % 4 == 1: a("s_waitcnt lgkmcnt(0)\nv_cmp_lt_i32 vcc, v249, v250")
            if n > R + 1:
                a(f"s_cbranch_vccnz L_F{n}\ns_waitcnt vmcnt({D-1})")
                a.label(f"L_F{n}")
                Dn = CD
        if P["AD"] and n >= P["AB"]:
            if n % 4 == 0: a("s_memrealtime s[26:27]")
            if n % 4 == 1: a(f"s_waitcnt lgkmcnt(0)\ns_sub_u32 s26, s26, s84\ns_cmp_gt_u32 s26, {P['A0'] + P['A1'] * n // 10}\ns_cselect_b64 vcc, -1, 0")
            if n > P["AB"] + 1:
                a(f"s_cbranch_vccnz L_F{n}\ns_waitcnt vmcnt({D-1})")
                a.label(f"L_F{n}")
                Dn = P["AD"]
        if n - Dn > st["landed"]:
            a(f"s_waitcnt vmcnt({Dn-1})"); st["landed"] = n - Dn
        if kind == "K":
            a(f"buffer_load_dwordx4 v{vKO}, s[4:7], s{sp} offen {NT} lds")
        else:
            r = vslot(i)
            a(f"buffer_load_dwordx4 v[{r}:{r+3}], v{vVO}, s[8:11], s{sp} offen {NT}")
        a(f"s_addk_i32 s{sp}, 0x1000\ns_and_b32 s{sp}, s{sp}, s{sMSK}")
        if (kind, i) == ("K", R - 1):
            assert st["setup"] == len(setup)
            stamp(7)
            a("s_barrier")
            stamp(1)
            for ks in range(4):
                a(f"ds_read_b128 v[{vQ+4*ks}:{vQ+4*ks+3}], v15 offset:{64*ks}")
            st["q"] = True
        if n == len(seq) - P["MLPOS"]:
            a(f"v_mov_b32 v14, {L_GO}\ns_mov_b64 exec, 1\nds_write_b32 v14, v14\ns_mov_b64 exec, -1")
        if n == len(seq) - max(12, WOP + 6):
            assert st["sm"] == 10
            make_tags(vD)
            remap(P["CM"])
            a(f"s_lshl_b32 s81, s{sCG}, 19\ns_lshr_b32 s82, s{sCS}, 2\ns_lshl_b32 s82, s82, 16\ns_add_u32 s81, s81, s82")
            a(f"s_lshl_b32 s82, s3, 14\ns_add_u32 s81, s81, s82\ns_and_b32 s82, s{sCS}, 3\ns_lshl_b32 s82, s82, 8\ns_add_u32 s81, s81, s82")
            a(f"v_and_b32 v14, 15, v0\nv_lshlrev_b32 v14, 4, v14\nv_lshl_add_u32 v14, v7, 10, v14\nv_add_u32 v{vKO}, s81, v14")
            a(f"s_lshl_b32 s81, s{sCG}, 18\ns_lshr_b32 s83, s{sCS}, 3\ns_lshl_b32 s83, s83, 16\ns_add_u32 s81, s81, s83\ns_add_u32 s81, s81, s82")
            a(f"s_and_b32 s83, s{sCS}, 4\ns_lshl_b32 s83, s83, 10\ns_add_u32 s81, s81, s83\ns_lshl_b32 s83, s3, 14\ns_add_u32 s81, s81, s83\nv_add_u32 v251, s81, v14")
            srd(4, pW2, 1792 * 1024)
            a(f"s_lshl_b32 s81, s3, 4\ns_add_u32 s81, s81, {L_H}\nv_lshl_add_u32 v252, v7, 2, s81")
            a(f"v_lshlrev_b32 v6, 4, v0\nv_add_u32 v3, s{sLB}, v6")
            a("v_and_b32 v14, 1, v0\nv_lshlrev_b32 v14, 10, v14\nv_lshrrev_b32 v15, 1, v0\nv_lshl_add_u32 v4, v15, 4, v14\ns_lshl_b32 s81, s3, 8\nv_add_u32 v4, s81, v4")
            if P["L1"]:
                a(f"s_lshl_b32 s81, s{sG}, 16\ns_lshl_b32 s82, s3, 14\ns_add_u32 s82, s82, s81\ns_lshl_b32 s83, s{sS}, 8\ns_add_u32 s82, s82, s83")
                a("v_and_b32 v14, 15, v0\nv_lshlrev_b32 v14, 4, v14\nv_lshl_add_u32 v5, v7, 13, v14\nv_add_u32 v5, s82, v5")
                a(f"s_lshl_b32 s81, s{sCG}, 16\ns_lshr_b32 s82, s{sCS}, 2\ns_lshl_b32 s82, s82, 13\ns_add_u32 s82, s82, s81\ns_lshl_b32 s81, s3, 6\ns_add_u32 s82, s82, s81")
                a("v_lshrrev_b32 v14, 2, v0\nv_lshlrev_b32 v14, 8, v14\nv_and_b32 v15, 3, v0\nv_lshl_add_u32 v6, v15, 4, v14\nv_add_u32 v6, s82, v6\ns_movk_i32 s29, 0x1000")
            else:
                a(f"s_lshl_b32 s81, s{sG}, 16\ns_lshl_b32 s82, s3, 14\ns_add_u32 s82, s82, s81\ns_lshl_b32 s83, s{sS}, 6\ns_add_u32 s82, s82, s83")
                a("v_lshrrev_b32 v14, 2, v0\nv_lshlrev_b32 v14, 11, v14\nv_and_b32 v15, 3, v0\nv_lshl_add_u32 v5, v15, 4, v14\nv_add_u32 v5, s82, v5")
                a(f"s_lshl_b32 s81, s{sCG}, 16\ns_and_b32 s82, s{sCS}, 28\ns_add_u32 s82, s82, s3\ns_lshl_b32 s82, s82, 11\ns_add_u32 s82, s82, s81\nv_add_u32 v6, s82, v6")
                a("s_movk_i32 s29, 0x400")
        elif n >= max(D, P["DI"]) - 1:
            work(BUD)
    vW = [vslot(128 + i) for i in range(6)]
    assert (128 + 5 - NV) // 2 < st["perm"]
    WOL = P["WOL"]
    def tile_loads(first, last):
        for i in range(first, last):
            if i < 4: a(f"s_movk_i32 s81, {4096*i}\nbuffer_load_dwordx4 v[{vW[i]}:{vW[i]+3}], v{vKO}, s[16:19], s81 offen {WNT}")
            else: a(f"s_movk_i32 s81, {8192*(i-4)}\nbuffer_load_dwordx4 v[{vW[i]}:{vW[i]+3}], v251, s[4:7], s81 offen {WNT}")
    NW = (6, 0, 0, 4, 2, 0)[WOL]
    tile_loads(0, NW)
    a(f"s_lshl_b32 s81, s3, 4\ns_add_u32 s81, s81, {L_FAC}\nv_mov_b32 v7, s81")
    n = len(seq)
    while work(10**6): pass
    while st["landed"] < n - 1:
        st["landed"] += 1
        left = n - 1 - st["landed"]
        paced = WOL == 5 and 0 < left < P["DW"]
        if seq[st["landed"]][1] % 2 == 1 or paced:
            a(f"s_waitcnt vmcnt({left + NW})")
            if paced:
                tile_loads(NW, NW + 1); NW += 1
            if left == 0:
                stamp(3)
                if WOL != 2: tile_loads(NW, 6)
            while work(10**6): pass
    assert st["pv"] == 32 and st["sm"] == 10

    def hold():
        a("s_waitcnt lgkmcnt(0)\ns_add_u32 s81, s84, 4800")
        a.label("L_HOLD")
        a("s_sleep 8\ns_memrealtime s[82:83]\ns_waitcnt lgkmcnt(0)\ns_sub_u32 s82, s82, s81\ns_cmp_lt_i32 s82, 0\ns_cbranch_scc1 L_HOLD")
    if P["NOTAIL"] == 1: hold()
    a(f"ds_write_b128 v3, v[{vACC}:{vACC+3}]\nds_write_b128 v3, v[{vACC+4}:{vACC+7}] offset:1024")
    a("s_waitcnt lgkmcnt(0)\ns_barrier")
    a("s_mov_b32 exec_lo, -1\ns_mov_b32 exec_hi, 0")
    a(f"ds_read_b128 v[16:19], v7")
    for w in range(4):
        if w == 2: a(f"v_add_u32 v14, {2*RING}, v4")
        a(f"ds_read_b128 v[{20+4*w}:{23+4*w}], v{4 if w < 2 else 14} offset:{(w % 2)*RING}")
    a("s_waitcnt lgkmcnt(3)")
    for i in range(4): a(f"v_mul_f32 v{20+i}, v16, v{20+i}")
    for w in range(1, 4):
        a(f"s_waitcnt lgkmcnt({3-w})")
        for i in range(4): a(f"v_fmac_f32 v{20+i}, v{16+w}, v{20+4*w+i}")
    tag4(20, vD)
    a(f"buffer_store_dwordx4 v[20:23], v5, s[12:15], 0 offen {P['P1S']}")
    a("s_mov_b64 exec, -1")
    stamp(4)
    if WOL == 2: tile_loads(0, 6)
    a("ds_read_b32 v18, v252\nv_mov_b32 v19, 0")
    if P["NOTAIL"] == 2: hold()
    a(f"buffer_load_dwordx4 v[24:27], v6, s[12:15], 0 offen {P['P1L']}\nbuffer_load_dwordx4 v[28:31], v6, s[12:15], s29 offen {P['P1L']}")
    a(f"v_lshlrev_b32 v3, 5, v0\ns_add_u32 s81, s{sLB}, 4096\nv_add_u32 v3, s81, v3")
    a("v_lshrrev_b32 v14, 3, v0\nv_lshlrev_b32 v4, 7, v14\nv_and_b32 v15, 3, v0\nv_lshl_add_u32 v4, v15, 5, v4\nv_bfe_u32 v14, v0, 2, 1\nv_lshl_add_u32 v4, v14, 4, v4")
    a(f"s_and_b32 s81, s{sCS}, 3\ns_lshl_b32 s81, s81, 15\ns_lshl_b32 s82, s{sCG}, 3\ns_lshr_b32 s83, s{sCS}, 2\ns_add_u32 s82, s82, s83\ns_lshl_b32 s82, s82, {9 if P['L2'] else 6}\ns_add_u32 s81, s81, s82\ns_add_u32 s81, s81, {WS_O2}")
    if P["L2"]: a("v_lshl_add_u32 v1, v0, 4, s81")
    else: a("v_lshrrev_b32 v14, 2, v0\nv_lshlrev_b32 v14, 12, v14\nv_lshl_add_u32 v14, v15, 4, v14\nv_add_u32 v1, s81, v14")
    a(f"v_add_u32 v2, {2*RING}, v4")
    for j in range(8): a(f"v_mov_b32 v{vT+4*j+3}, 0")
    a(f"s_waitcnt vmcnt({2 if WOL == 2 else 3}) lgkmcnt(0)")
    for q in range(4):
        for p in range(3):
            a(f"v_perm_b32 v{vT+8*q+p}, v{vW[2*p+1]+q}, v{vW[2*p]+q}, s{sLO}\nv_perm_b32 v{vT+8*q+4+p}, v{vW[2*p+1]+q}, v{vW[2*p]+q}, s{sHI}")
    a("s_branch L_P1CHK")
    a.label("L_P1")
    if P["S1"]: a(f"s_sleep {P['S1']}")
    a(f"buffer_load_dwordx4 v[24:27], v6, s[12:15], 0 offen {P['P1L']}\nbuffer_load_dwordx4 v[28:31], v6, s[12:15], s29 offen {P['P1L']}")
    a.label("L_P1CHK")
    a("s_waitcnt vmcnt(0)")
    untag(14, 24, 8, vD)
    spin_tail("L_P1")
    a("s_mov_b64 exec, -1")
    stamp(5)
    for i in range(4): a(f"v_add_f32 v{24+i}, v{24+i}, v{28+i}")
    quad_scatter_sum(24)
    for i in range(4):
        a(f"v_mov_b32_dpp v{28+i}, v24 quad_perm:[{i},{i},{i},{i}] row_mask:0xf bank_mask:0xf")
    a("v_cvt_pk_bf16_f32 v16, v28, v29\nv_cvt_pk_bf16_f32 v17, v30, v31")
    for j in range(8):
        a(f"v_mfma_f32_16x16x32_bf16 v[{32+4*j}:{35+4*j}], v[16:19], v[{vT+4*j}:{vT+4*j+3}], 0")
    a("s_mov_b64 exec, 0xffff")
    for j in range(0, 8, 2):
        a(f"ds_write2_b32 v3, v{32+4*j}, v{36+4*j} offset0:{j} offset1:{j+1}")
    a("s_waitcnt lgkmcnt(0)\ns_barrier")
    a("s_cmp_lg_u32 s3, 0\ns_cbranch_scc1 L_FINAL")
    a("s_mov_b32 exec_lo, -1\ns_mov_b32 exec_hi, 0")
    for w in range(4):
        a(f"ds_read_b128 v[{20+4*w}:{23+4*w}], v{4 if w < 2 else 2} offset:{(w % 2)*RING+4096}")
    for w in range(1, 4):
        a(f"s_waitcnt lgkmcnt({3-w})")
        for i in range(4): a(f"v_add_f32 v{20+i}, v{20+i}, v{20+4*w+i}")
    tag4(20, vD)
    a(f"buffer_store_dwordx4 v[20:23], v1, s[12:15], 0 offen {P['P2S']}")
    stamp(6)
    a("s_branch L_EXIT")

    a.label("L_FINAL")
    a("s_cmp_lg_u32 s3, 1\ns_cbranch_scc1 L_EXIT\ns_cmp_lt_u32 s2, 224\ns_cbranch_scc1 L_EXIT")
    a("s_mov_b64 exec, -1")
    final_index()
    a(f"s_lshl_b32 s29, s{sF}, 12\ns_add_u32 s29, s29, {WS_O2}\nv_lshlrev_b32 v6, 4, v0\nv_lshlrev_b32 v7, 2, v0\nv_add_u32 v7, {L_FIN}, v7")
    a("ds_read_b32 v16, v7")
    a("v_lshrrev_b32 v14, 4, v0\nv_lshlrev_b32 v14, 1, v14\nv_lshl_add_u32 v5, v15, 4, v14")
    if P["L2"]:
        a(f"s_lshr_b32 s29, s{sF}, 3\ns_lshl_b32 s29, s29, 15\ns_and_b32 s83, s{sF}, 7\ns_lshl_b32 s83, s83, 6\ns_add_u32 s29, s29, s83\ns_add_u32 s29, s29, {WS_O2}")
        a("v_lshrrev_b32 v6, 2, v0\nv_lshlrev_b32 v6, 9, v6\nv_lshl_add_u32 v6, v15, 4, v6")
    gather("L_P2", 24, 4, 29, 6, 14, vD, P["S2"], 8192 if P["L2"] else 1024, P["P2L"])
    stamp(6)
    for i in range(8): a(f"v_add_f32 v{24+i}, v{24+i}, v{32+i}")
    for i in range(4): a(f"v_add_f32 v{24+i}, v{24+i}, v{28+i}")
    quad_scatter_sum(24)
    a("s_waitcnt lgkmcnt(0)")
    a("v_add_f32 v24, v16, v24\nv_cvt_pk_bf16_f32 v24, v24, v24")
    a("s_mov_b32 exec_lo, 0x000f000f\ns_mov_b32 exec_hi, 0x000f000f")
    a("buffer_store_short v24, v5, s[20:23], s82 offen")
    a(f"s_cmp_lg_u32 s2, 224\ns_cbranch_scc1 L_NOE\ns_mov_b64 exec, 1\nv_mov_b32 v24, s{sE}\nv_mov_b32 v5, {WS_E}\nbuffer_store_dword v24, v5, s[12:15], 0 offen")
    a.label("L_NOE")
    if DBG: a("s_waitcnt vmcnt(0)")
    a.label("L_EXIT")
    stamp(8)
    dump_stamps()
    a("s_endpgm")

    a.label("L_HELP")
    srd(12, pWS, WS_BYTES)
    load_epoch()
    a(f"v_mov_b32 v{hA}, -1\nv_mov_b32 v{hA+1}, -1\nv_lshrrev_b32 v7, 4, v0")
    a(f"v_lshlrev_b32 v6, 3, v0\nv_add_u32 v6, {L_ML}, v6\ns_mov_b64 exec, 0x1ffff\nds_write_b64 v6, v[{hA}:{hA+1}]\ns_mov_b64 exec, -1")
    a("s_waitcnt vmcnt(19)")
    vM, vR, vX = 200, 201, 202
    for i in range(4): unpack(hU + 2 * i, hU + 2 * i + 1, hXA + i)
    def allsum(x, t):
        for r in (1, 2, 4, 8): dpp("v_add_f32", x, f"row_ror:{r}")
        rows_allreduce("v_add_f32", x, t)
    a(f"v_add_f32 v{vM}, v{hU}, v{hU+1}")
    for i in range(2, 8): a(f"v_add_f32 v{vM}, v{vM}, v{hU+i}")
    allsum(vM, vX)
    a(f"v_mul_f32 v{vM}, 0x3b000000, v{vM}")
    for i in range(8): a(f"v_sub_f32 v{hU+i}, v{hU+i}, v{vM}")
    a(f"v_mul_f32 v{vR}, v{hU}, v{hU}")
    for i in range(1, 8): a(f"v_fmac_f32 v{vR}, v{hU+i}, v{hU+i}")
    allsum(vR, vX)
    a(f"v_mul_f32 v{vR}, 0x3b000000, v{vR}")
    rnd1(vM); rnd1(vR)
    a(f"v_add_f32 v{vR}, 0x3727c5ac, v{vR}"); rnd1(vR)
    a(f"v_sqrt_f32 v{vR}, v{vR}"); rnd1(vR)
    a(f"v_rcp_f32 v{vR}, v{vR}")

    def normalise(x, n):
        for i in range(n): unpack(hU + 2 * i, hU + 2 * i + 1, x + i)
        for i in range(2 * n): a(f"v_sub_f32 v{hU+i}, v{hU+i}, v{vM}")
        for i in range(n): a(f"v_cvt_pk_bf16_f32 v{x+i}, v{hU+2*i}, v{hU+2*i+1}")
        for i in range(n): unpack(hU + 2 * i, hU + 2 * i + 1, x + i)
        for i in range(2 * n): a(f"v_mul_f32 v{hU+i}, v{hU+i}, v{vR}")
        for i in range(n): a(f"v_cvt_pk_bf16_f32 v{x+i}, v{hU+2*i}, v{hU+2*i+1}")

    def gemv(acc, w, npair, xsrc, tmp, waits=None):
        for p in range(npair):
            if waits: a(f"s_waitcnt vmcnt({waits(p)})")
            ra, rb = w + 8 * p, w + 8 * p + 4
            for q in range(4):
                a(f"v_perm_b32 v{tmp+2*q}, v{rb+q}, v{ra+q}, s{sLO}\nv_perm_b32 v{tmp+2*q+1}, v{rb+q}, v{ra+q}, s{sHI}")
            for j in range(8):
                a(f"v_dot2_f32_bf16 v{acc+j}, v{tmp+j}, {xsrc(p)}, {'0' if p == 0 else f'v{acc+j}'}")

    def publish64(x, soff):
        for j in range(4): a(f"v_permlane32_swap_b32 v{x+j}, v{x+4+j}")
        for j in range(4): a(f"v_add_f32 v{x+j}, v{x+j}, v{x+4+j}")
        for j in range(4): a(f"v_mov_b32 v{x+4+j}, v{x+j}")
        for j in range(4): a(f"v_permlane16_swap_b32 v{x+j}, v{x+4+j}")
        for j in range(4): a(f"v_add_f32 v{x+j}, v{x+j}, v{x+4+j}")
        for j in range(4): dpp("v_add_f32", x + j, "row_ror:8")
        tag4(x, hT)
        a(f"s_mov_b32 exec_lo, 0xff\ns_mov_b32 exec_hi, 0xff\nbuffer_store_dwordx4 v[{x}:{x+3}], v2, s[12:15], s{soff} offen sc1\ns_mov_b64 exec, -1")

    a("s_waitcnt vmcnt(16) lgkmcnt(0)")
    normalise(hXQ, 8)
    make_tags(hT)
    a("v_lshrrev_b32 v2, 5, v0\nv_lshl_add_u32 v2, v2, 7, v4")
    a(f"s_lshl_b32 s29, s{sG}, 13\ns_add_u32 s29, s29, {WS_Q}\ns_lshl_b32 s82, s{sCS}, 8\ns_lshl_b32 s83, s{sCG}, 13\ns_add_u32 s82, s82, s83\ns_add_u32 s82, s82, {WS_Q}")
    gemv(hA, hW, 8, lambda p: f"v{hXQ+p}", hU, lambda p: 14 - 2 * p)
    publish64(hA, 82)
    stamp(1)

    def mlp_first():
        a("s_cmp_ge_u32 s2, 224\ns_cbranch_scc1 L_NOW1")
        srd(4, pW1, 512 * 3584)
        a(f"s_and_b32 s81, s2, 7\ns_mul_i32 s81, s81, {64*3584}\ns_lshr_b32 s83, s2, 3\ns_lshl_b32 s83, s83, 7\ns_add_u32 s81, s81, s83")
        a("v_mul_u32_u24 v3, 28672, v1\nv_add_u32 v3, v3, v4")
        for e in range(8):
            a(f"buffer_load_dwordx4 v[{hW1+4*e}:{hW1+4*e+3}], v3, s[4:7], s81 offen {WNT}")
            if e < 7: a("s_addk_i32 s81, 3584")
        normalise(hXF, 4)
        a(f"s_lshl_b32 s82, s2, 8\ns_add_u32 s82, s82, {WS_H}")
        gemv(hA, hW1, 4, lambda p: f"v{hXF+p}", hU, lambda p: 6 - 2 * p)
        if not P["NOH"]: publish64(hA, 82)
        a.settle()
        a.label("L_NOW1")
        stamp(4)

    if not P["W1L"]: mlp_first()

    a(f"v_lshlrev_b32 v3, 7, v7\nv_add_u32 v3, v3, v4\nv_bfe_u32 v6, v0, 3, 1\nv_lshl_add_u32 v3, v6, 3, v3\nv_add_u32 v3, {L_Q}, v3")
    gather("L_H0", hW, 8, 29, 5, vX, hT, P["QSLEEP"])
    stamp(2)
    for j in range(16): a(f"v_add_f32 v{hW+j}, v{hW+j}, v{hW+16+j}")
    for j in range(8): a(f"v_add_f32 v{hW+j}, v{hW+j}, v{hW+8+j}")
    for j in range(4): a(f"v_cvt_pk_bf16_f32 v{hW+j}, v{hW+2*j}, v{hW+2*j+1}")
    a(f"ds_write_b64 v3, v[{hW}:{hW+1}]\nds_write_b64 v3, v[{hW+2}:{hW+3}] offset:512\ns_waitcnt lgkmcnt(0)")
    stamp(3)
    a("s_barrier")
    if P["W1L"]: mlp_first()

    a(f"v_and_b32 v3, 15, v0\nv_lshlrev_b32 v6, 3, v3\nv_add_u32 v6, {L_ML}, v6")
    a.label("L_H2")
    a("s_sleep 4\nds_read_b64 v[8:9], v6\ns_waitcnt lgkmcnt(0)\nv_max_u32 v10, v8, v9\nv_cmp_eq_u32 vcc, -1, v10")
    spin_tail("L_H2")
    a("v_mov_b32 v12, v8")
    dpp("v_max_f32", 12, "row_ror:4"); dpp("v_max_f32", 12, "row_ror:8")
    a("v_sub_f32 v13, v8, v12\nv_mul_f32 v13, 0x3fb8aa3b, v13\nv_exp_f32 v13, v13\nv_mul_f32 v13, v13, v9")
    dpp("v_add_f32", 13, "row_ror:4"); dpp("v_add_f32", 13, "row_ror:8")
    a("v_mov_b32 v14, 0\nv_mov_b32 v15, 0")
    tag4(12, hT)
    a(f"s_lshl_b32 s32, s{sG}, {11+P['LM']}\ns_add_u32 s32, s32, {WS_ML}\ns_lshl_b32 s81, s{sS}, {6+P['LM']}\ns_add_u32 s81, s81, s32")
    a("v_lshrrev_b32 v1, 2, v0\nv_lshlrev_b32 v1, 7, v1\nv_and_b32 v2, 3, v0\nv_lshl_add_u32 v1, v2, 4, v1")
    if not P["NOML"]: a("s_mov_b64 exec, 15\nbuffer_store_dwordx4 v[12:15], v5, s[12:15], s81 offen sc1\ns_mov_b64 exec, -1")
    stamp(6)

    remap(P["CM"])
    for j in range(4): a(f"v_mov_b32 v{hW+j}, 0")
    a(f"s_cmp_eq_u32 s{sCG}, 7\ns_cbranch_scc1 L_NOH")
    srd(16, pB1, 3584)
    a(f"s_lshl_b32 s81, s{sCG}, 2\ns_lshr_b32 s82, s{sCS}, 3\ns_add_u32 s81, s81, s82\ns_and_b32 s82, s{sCS}, 4")
    a(f"s_lshl_b32 s29, s81, 11\ns_lshl_b32 s83, s82, 5\ns_add_u32 s29, s29, s83\ns_add_u32 s29, s29, {WS_H}")
    a("s_lshl_b32 s81, s81, 7\ns_lshl_b32 s82, s82, 1\ns_add_u32 s81, s81, s82\nbuffer_load_dwordx2 v[204:205], v4, s[16:19], s81 offen")
    a("v_lshrrev_b32 v3, 3, v0\nv_lshl_add_u32 v3, v3, 8, v4")
    gather("L_H5", hW, 1, 29, 3, vX, hT, P["QSLEEP"])
    for j in range(4): dpp("v_add_f32", hW + j, "row_ror:8")
    for sw in ("v_permlane16_swap_b32", "v_permlane32_swap_b32"):
        for j in range(4): a(f"v_mov_b32 v{hW+4+j}, v{hW+j}")
        for j in range(4): a(f"{sw} v{hW+j}, v{hW+4+j}")
        for j in range(4): a(f"v_add_f32 v{hW+j}, v{hW+j}, v{hW+4+j}")
    def rnd4(x, t):
        a(f"v_cvt_pk_bf16_f32 v{t}, v{x}, v{x+1}\nv_cvt_pk_bf16_f32 v{t+1}, v{x+2}, v{x+3}")
        unpack(x, x + 1, t); unpack(x + 2, x + 3, t + 1)
    rnd4(hW, hW + 8)
    unpack(hW + 4, hW + 5, 204); unpack(hW + 6, hW + 7, 205)
    for j in range(4): a(f"v_add_f32 v{hW+j}, v{hW+j}, v{hW+4+j}")
    rnd4(hW, hW + 8)
    for op in ("v_mul_f32 {t}, {x}, {x}", "v_mul_f32 {t}, {t}, {x}", "v_mul_f32 {t}, 0x3d372713, {t}", "v_add_f32 {t}, {x}, {t}",
               "v_mul_f32 {t}, 0xc0135761, {t}", "v_exp_f32 {t}, {t}", "v_add_f32 {t}, 1.0, {t}", "v_rcp_f32 {t}, {t}", "v_mul_f32 {x}, {x}, {t}",
               "v_cvt_pk_bf16_f32 {x}, {x}, {x}"):
        for j in range(4): a(op.format(x=f"v{hW+j}", t=f"v{hW+4+j}"))
    a.settle()
    a.label("L_NOH")
    a(f"v_lshrrev_b32 v3, 1, v0\nv_lshlrev_b32 v3, 4, v3\nv_and_b32 v6, 1, v0\nv_lshl_add_u32 v3, v6, 1, v3\nv_add_u32 v3, {L_H}, v3\ns_mov_b64 exec, 0xff")
    for j in range(4): a(f"ds_write_b16 v3, v{hW+j} offset:{4*j}")
    a("s_mov_b64 exec, -1")
    stamp(5)

    a("s_cmp_lt_u32 s2, 224\ns_cbranch_scc1 L_NOFIN")
    srd(4, pX, 1024); srd(8, pB2, 1024)
    final_index()
    a("v_and_b32 v3, 3, v0\nv_lshlrev_b32 v3, 4, v3\nv_lshl_add_u32 v3, v7, 1, v3")
    a("buffer_load_ushort v204, v3, s[4:7], s82 offen\nbuffer_load_ushort v206, v3, s[8:11], s82 offen")
    a(f"v_lshlrev_b32 v3, 2, v0\nv_add_u32 v3, {L_FIN}, v3\ns_waitcnt vmcnt(0)")
    a("v_lshlrev_b32 v206, 16, v206\nv_lshlrev_b32 v204, 16, v204\nv_add_f32 v204, v204, v206\nds_write_b32 v3, v204")
    a.settle()
    a.label("L_NOFIN")

    if P["WOT"]:
        srd(16, pWO, 4 << 20)
        a(f"s_lshl_b32 s81, s{sG}, 19\ns_lshr_b32 s82, s{sS}, 2\ns_lshl_b32 s82, s82, 16\ns_add_u32 s81, s81, s82")
        a(f"s_and_b32 s82, s{sS}, 3\ns_lshl_b32 s82, s82, 8\ns_add_u32 s81, s81, s82\nv_mov_b32 v6, 0\nbuffer_load_dword v207, v6, s[16:19], s81 offen")
    a(f"v_mov_b32 v6, {L_GO}")
    a.label("L_H4")
    a("s_sleep 4\nds_read_b32 v10, v6\ns_waitcnt lgkmcnt(0)\nv_cmp_eq_u32 vcc, -1, v10")
    spin_tail("L_H4")
    if not P["NOML"]: gather("L_H3", 12, 2, 32, 1 if P["LM"] else 5, vX, hT, P["QSLEEP"], 1024 << P["LM"])
    a("v_max_f32 v10, v12, v16")
    dpp("v_max_f32", 10, "row_ror:4"); dpp("v_max_f32", 10, "row_ror:8")
    rows_allreduce("v_max_f32", 10, 11)
    a("v_sub_f32 v12, v12, v10\nv_sub_f32 v16, v16, v10\nv_sub_f32 v8, v8, v10")
    a("v_mul_f32 v12, 0x3fb8aa3b, v12\nv_mul_f32 v16, 0x3fb8aa3b, v16\nv_mul_f32 v8, 0x3fb8aa3b, v8")
    a("v_exp_f32 v12, v12\nv_exp_f32 v16, v16\nv_exp_f32 v8, v8")
    a("v_mul_f32 v12, v12, v13\nv_fmac_f32 v12, v16, v17")
    dpp("v_add_f32", 12, "row_ror:4"); dpp("v_add_f32", 12, "row_ror:8")
    rows_allreduce("v_add_f32", 12, 11)
    a("v_rcp_f32 v12, v12\nv_mul_f32 v8, v8, v12")
    a(f"v_and_b32 v6, 3, v0\nv_lshlrev_b32 v6, 4, v6\nv_and_b32 v9, 12, v0\nv_add3_u32 v6, v6, v9, 0\nv_add_u32 v6, {L_FAC}, v6")
    a("s_mov_b64 exec, 0xffff\nds_write_b32 v6, v8\ns_waitcnt lgkmcnt(0)")
    stamp(7)
    a("s_branch L_EXIT")

    if CD:
        CP, LS, GL = P["CP"], P["CST"], P["CX"] == 5
        G6 = P["CX"] == 6
        a.label("L_CTRL")
        a(f"v_lshlrev_b32 v1, 4, v0\nv_add_u32 v1, {L_PR}, v1")
        for i in range(4): a(f"v_mov_b32 v{4+i}, 0")
        a("ds_write_b128 v1, v[4:7]\nds_write_b128 v1, v[4:7] offset:1024")
        a("s_waitcnt lgkmcnt(0)")
        srd(12, pWS, WS_BYTES)
        load_epoch()
        a(f"s_mul_i32 s81, s{sG}, {LS}\ns_add_u32 s81, s81, {WS_PR}\nv_lshl_add_u32 v2, v0, 2, s81\nv_mov_b32 v10, {4*R - 2*CP}")
        a(f"s_mov_b32 exec_lo, 0\nv_and_b32 v2, 7, v0\nv_mul_u32_u24 v2, {LS}, v2\nv_add_u32 v2, {WS_PR + 8*LS}, v2\nv_mov_b32 v10, 0\ns_mov_b32 exec_lo, -1")
        a(f"s_lshl_b64 s[16:17], 1, s{sS}\ns_lshl_b32 s21, 1, s{sG}\ns_andn2_b32 s22, {255 if GL else 0}, s21")
        a(f"s_lshl_b32 s81, s{sG}, 2\ns_xor_b32 s81, s81, s{sS}\ns_and_b32 s81, s81, {P['CM5']}\ns_cselect_b32 s21, 0, s21")
        a(f"s_lshl_b32 s81, s{sS}, 3\ns_add_u32 s81, s81, s{sG}\ns_mul_i32 s81, s81, {4*CP}\ns_lshr_b32 s81, s81, 8\ns_add_u32 s26, s81, {4*R}")
        if G6:
            a(f"v_add_u32 v11, {8*LS}, v2\ns_mov_b32 exec_lo, 0\nv_mov_b32 v11, v2\ns_mul_i32 s81, s{sG}, {LS}\ns_add_u32 s81, s81, {WS_PR + 128}\nv_mov_b32 v2, s81\ns_mov_b32 exec_lo, -1")
            a(f"s_lshl_b32 s21, 1, s{sG}\ns_andn2_b32 s21, 255, s21\ns_mov_b32 s22, 1")
            a(f"s_lshl_b32 s81, s{sG}, 2\ns_sub_u32 s23, s{sS}, s81\ns_and_b32 s23, s23, 31\ns_mul_i32 s23, s23, {P['CK']}")
        a(f"s_bitcmp0_b32 s{sG}, 0\ns_cselect_b32 s20, {P['CC'] + P['CB']}, {P['CC']}")
        a(f"s_waitcnt lgkmcnt(0)\ns_add_u32 s{sE}, s{sE}, 0x9b35e3c1\ns_lshl_b32 s{sE}, s{sE}, 10\ns_movk_i32 s18, 0x400\ns_not_b32 s19, s{sE}")
        a("s_barrier")
        a.label("L_C0")
        a(f"s_sleep {P['CSL']}\nds_read_b32 v3, v1\ns_sub_u32 s{sSPIN}, s{sSPIN}, 1\ns_cbranch_scc1 L_EXIT\ns_waitcnt lgkmcnt(0)")
        a("v_readlane_b32 s8, v3, 0\nv_readlane_b32 s9, v3, 16\nv_readlane_b32 s10, v3, 32\nv_readlane_b32 s11, v3, 48")
        a("s_add_u32 s8, s8, s9\ns_add_u32 s10, s10, s11\ns_add_u32 s8, s8, s10\ns_cmp_lt_u32 s8, s26\ns_cbranch_scc1 L_C0")
        a(f"s_add_u32 s26, s26, {4*CP}\ns_or_b32 s9, s8, s{sE}\nv_mov_b32 v9, s9\nv_mov_b32 v4, s19")
        a(f"s_mov_b32 exec_hi, s22\nbuffer_load_dword v4, v2, s[12:15], 0 offen {P['CLP']}")
        a(f"s_mov_b64 exec, s[16:17]\nbuffer_store_dword v9, v2, s[12:15], 0 offen {P['CSP']}\ns_mov_b64 exec, -1")
        a(f"v_lshlrev_b32 v5, 2, v3\nv_add_u32 v3, s20, v3\ns_waitcnt vmcnt(1)")
        a(f"v_xor_b32 v4, s{sE}, v4\nv_cmp_gt_u32 vcc, s18, v4\nv_cndmask_b32 v4, v10, v4, vcc")
        for r in (1, 2, 4, 8): dpp("v_add_u32", 4, f"row_ror:{r}")
        a("v_readlane_b32 s8, v4, 0\nv_readlane_b32 s9, v4, 16\nv_readlane_b32 s10, v4, 32")
        a(f"s_add_u32 s8, s8, s9\ns_lshr_b32 s8, s8, 5\ns_add_u32 s8, s8, {2*CP}")
        if GL:
            a(f"s_min_u32 s9, s8, 0x3ff\ns_or_b32 s9, s9, s{sE}\nv_mov_b32 v9, s9")
            a(f"s_mov_b32 exec_lo, 0\ns_mov_b32 exec_hi, s21\ns_cbranch_execz L_C1\nbuffer_store_dword v9, v2, s[12:15], 0 offen {P['CGP']}")
            a.label("L_C1")
            a("s_mov_b64 exec, -1\ns_bcnt1_i32_b32 s11, vcc_hi")
            a(f"s_sub_u32 s9, {P['CR']}, s8\ns_mul_i32 s9, s9, s11\ns_add_u32 s9, s9, s10\ns_ashr_i32 s9, s9, {P['CW']}\ns_add_u32 s8, s8, s9")
        if G6:
            a("s_sub_u32 s10, s10, 0x200\ns_cmp_eq_u32 vcc_hi, 0\ns_cselect_b32 s10, 0, s10")
            a("s_sub_u32 s23, s23, 1\ns_cbranch_scc0 L_C1")
            a(f"s_min_u32 s9, s8, 0x3ff\ns_or_b32 s9, s9, s{sE}\nv_mov_b32 v9, s9\nv_mov_b32 v4, s19")
            a(f"s_mov_b32 exec_lo, 0\ns_mov_b32 exec_hi, s21\nbuffer_load_dword v4, v11, s[12:15], 0 offen {P['CGL']}")
            a(f"s_mov_b32 exec_lo, -1\ns_mov_b32 exec_hi, 0\nbuffer_store_dword v9, v11, s[12:15], 0 offen {P['CGP']}\ns_mov_b64 exec, -1\ns_waitcnt vmcnt(1)")
            a(f"v_xor_b32 v4, s{sE}, v4\nv_cmp_gt_u32 vcc, s18, v4\nv_cndmask_b32 v4, v10, v4, vcc")
            for r in (1, 2, 4, 8): dpp("v_add_u32", 4, f"row_ror:{r}")
            a("v_readlane_b32 s10, v4, 32\ns_bcnt1_i32_b32 s11, vcc_hi")
            a(f"s_sub_u32 s9, {P['CR']}, s8\ns_mul_i32 s9, s9, s11\ns_add_u32 s9, s9, s10\ns_ashr_i32 s10, s9, {P['CW']}")
            a(f"s_add_u32 s9, s10, 0x200\ns_and_b32 s9, s9, 0x3ff\ns_or_b32 s9, s9, s{sE}\nv_mov_b32 v9, s9")
            a("s_mov_b32 exec_lo, 0\ns_mov_b32 exec_hi, 1\nbuffer_store_dword v9, v2, s[12:15], 0 offen\ns_mov_b64 exec, -1")
            a.label("L_C1")
            a("s_add_u32 s8, s8, s10")
        a(f"v_sub_u32 v5, s8, v5\nv_mul_i32_i24 v5, {P['CG']}, v5\nv_ashrrev_i32 v5, 2, v5\nv_add_u32 v4, v5, v3")
        a("v_mov_b32 v5, v4\nv_mov_b32 v6, v4\nv_mov_b32 v7, v4\nds_write_b128 v1, v[4:7] offset:1024")
        a(f"s_cmp_lt_u32 s26, {4*P['CE']}\ns_cbranch_scc1 L_C0\ns_waitcnt lgkmcnt(0)\ns_branch L_EXIT")

    a.raw(f""".section .rodata,"a"
.p2align 6
.amdhsa_kernel {NAME}_kernel
  .amdhsa_next_free_vgpr 256
  .amdhsa_next_free_sgpr 102
  .amdhsa_accum_offset 256
  .amdhsa_group_segment_fixed_size 0
  .amdhsa_kernarg_size 104
  .amdhsa_user_sgpr_count 2
  .amdhsa_user_sgpr_kernarg_segment_ptr 1
  .amdhsa_system_sgpr_workgroup_id_x 1
  .amdhsa_float_denorm_mode_32 3
.end_amdhsa_kernel""")
    return a.text(), LDS, forced


if __name__ == "__main__":
    kw = {}
    out = f"cdna_kernels/{NAME}.s"
    for arg in sys.argv[1:]:
        k, v = arg.split("=")
        if k == "out": out = v
        else: kw[k] = int(v) if v.lstrip("-").isdigit() else v
    text, lds, forced = gen(**kw)
    open(out, "w").write(text)
    print("wrote", out, len(text), "bytes, lds", lds, "forced", forced)
```

```python
import sys
from asm import Asm

NAME = "parallel_sum__gqa_block_cached__dense_activation_gelu__decode"

DEF = dict(D=5, R=36, NP=0, NV=32, ROT=16, NT="nt", DBG=0, BUD=200, WNT="nt", NORND=0, MLPOS=48, QSLEEP=8, MAP="x", PWG=-1, PST=0, S1=0, S2=0, DE=0, DEN=0, WOP=0, WOT=0, NOWO=0, NOTAIL=0, CM=10, QM=1, FM=2, AD=0, A0=150, A1=143, AB=36, CD=7, CP=16, CN=4, CG=3, CC=5, CE=240, CSL=2, CST=4224, CX=4, L1=1, L2=1, LM=1, LF=0, DP="", CSP="", CLP="nt", CB=3, CM5=31, CGP="sc1", CR=56, CW=3, CK=1, CGL="sc1", NOF=0, NOML=0, NOH=0, WOL=5, P1S="sc1", P1L="sc1", P2S="sc1", P2L="sc1", DI=0, DIN=0, W1L=0, DW=4, G1=0, G2=0, Z1=2, Z2=2, LOC=1, LO2=1, TW=240, X2=0, PF=0, TNT="nt", PNT="", PFL=0, PLS="")

WS_O1, WS_O2, WS_F, WS_ML, WS_E, WS_Q, WS_H, WS_DBG = 0, 512 << 10, 640 << 10, 1088 << 10, 1120 << 10, 1280 << 10, 1344 << 10, 2 << 20
WS_PR = 1536 << 10
WS_BYTES = 4 << 20
FSTRIDE = 224 * 64
SLOT = 1040
SPIN = 400000


def gen(**kw):
    P = dict(DEF); P.update(kw)
    D, R, NP, NV, ROT, NT, DBG, BUD, WNT = (P[k] for k in ("D", "R", "NP", "NV", "ROT", "NT", "DBG", "BUD", "WNT"))
    RING = R * SLOT
    LOC = P["LOC"]
    if LOC: P["CM"], P["FM"] = 0, 4
    L_Q = 4 * RING
    L_ML, L_GO, L_FAC, L_FIN = L_Q + 1024, L_Q + 1024 + 128, L_Q + 1024 + 192, L_Q + 1024 + 256
    L_H = L_FIN + 512
    L_LOC = L_H + 64
    L_PR = L_LOC + (64 if LOC else 0)
    CD = P["CD"]
    LDS = max(L_PR + (2048 if CD else 0), 84 << 10)
    a = Asm()
    hdr = open(f"cdna_kernels/{NAME}.s.ref").read().split("; Override")[0]
    a.raw(hdr.rstrip())
    a.raw(f"; @launch grid=(256,1,1) block=({384 if CD else 320},1,1) lds={LDS}")
    a.raw('.amdgcn_target "amdgcn-amd-amdhsa--gfx950"')
    a.raw(f".text\n.globl {NAME}_kernel\n.p2align 8\n.type {NAME}_kernel,@function\n{NAME}_kernel:")

    pX, pK, pV, pWQ, pWO, pW1, pB1, pW2, pB2, pOUT, pDBG, pWS = 36, 38, 40, 42, 44, 48, 50, 52, 54, 56, 58, 60
    sG, sS, sKP, sVP, sMSK, sLB, sLO, sHI, sSPIN = 62, 63, 64, 65, 66, 68, 69, 70, 80
    sCLS, sE = 72, 28
    sCG, sCS = 33, 34

    def remap(mode):
        if mode < 8: a(f"s_add_u32 s{sCG}, s{sG}, {mode}\ns_and_b32 s{sCG}, s{sCG}, 7\ns_mov_b32 s{sCS}, s{sS}")
        elif mode == 8: a(f"s_lshr_b32 s{sCG}, s2, 5\ns_and_b32 s{sCS}, s2, 31")
        elif mode == 9: a(f"s_and_b32 s{sCG}, s{sS}, 3\ns_add_u32 s{sCG}, s{sCG}, s{sG}\ns_add_u32 s{sCG}, s{sCG}, 1\ns_and_b32 s{sCG}, s{sCG}, 7\ns_mov_b32 s{sCS}, s{sS}")

        elif mode == 10:
            a(f"s_lshr_b32 s{sCG}, s{sS}, 3\ns_lshl_b32 s{sCG}, s{sCG}, 1\ns_andn2_b32 s{sCS}, 1, s{sG}\ns_add_u32 s{sCG}, s{sCG}, s{sCS}")
            a(f"s_and_b32 s{sCS}, s{sS}, 7\ns_lshl_b32 s{sCS}, s{sCS}, 3\ns_add_u32 s{sCS}, s{sCS}, s{sG}\ns_lshr_b32 s{sCS}, s{sCS}, 1")

    sF = 35
    def final_index():
        if P["FM"] == 0: a(f"s_and_b32 s{sF}, s2, 31")
        else:
            a(f"s_add_u32 s{sF}, s2, {2*P['FM']}\ns_and_b32 s{sF}, s{sF}, 7\ns_lshl_b32 s{sF}, s{sF}, 2\ns_bfe_u32 s82, s2, 0x20003\ns_add_u32 s{sF}, s{sF}, s82")
        a(f"s_lshr_b32 s82, s{sF}, 1\ns_lshl_b32 s82, s82, 6\ns_and_b32 s83, s{sF}, 1\ns_lshl_b32 s83, s83, 3\ns_add_u32 s82, s82, s83")

    def load_epoch():
        a(f"s_add_u32 s30, s{pWS}, {WS_E}\ns_addc_u32 s31, s{pWS+1}, 0\ns_load_dword s{sE}, s[30:31], 0")

    def make_tags(vt):
        a(f"s_add_u32 s{sE}, s{sE}, 0x9b35e3c1\nv_and_b32 v{vt+3}, 1, v0\nv_lshlrev_b32 v{vt+3}, 4, v{vt+3}\nv_lshrrev_b32 v{vt+3}, v{vt+3}, s{sE}")
        for i in range(4): a(f"v_bfe_u32 v{vt+i}, v{vt+3}, {4*i}, 4")

    def tag4(x, vt):
        for i in range(4): a(f"v_and_or_b32 v{x+i}, v{x+i}, -16, v{vt+i}")

    def untag(t, x, n, vt):
        for i in range(n): a(f"v_xor_b32 v{x+i}, v{vt + i % 4}, v{x+i}")
        a(f"v_or3_b32 v{t}, v{x}, v{x+1}, v{x+2}")
        for i in range(3, n - 1, 2): a(f"v_or3_b32 v{t}, v{t}, v{x+i}, v{x+i+1}")
        a(f"v_or_b32 v{t}, v{t}, v{x+n-1}\nv_and_b32 v{t}, 15, v{t}\nv_cmp_ne_u32 vcc, 0, v{t}\ns_wqm_b64 exec, vcc")

    def gather(label, dst, n, sbase, vaddr, t, vt, sleep=0, stride=1024, pol="sc1"):
        if sleep:
            a(f"s_branch {label}A")
            a.label(label)
            a(f"s_sleep {sleep}")
            a.label(label + "A")
        else:
            a.label(label)
        per = max(1, 4096 // stride)
        for i in range(n):
            if i % per == 0 and i: a(f"s_add_u32 s81, s{sbase}, {stride*i}")
            a(f"buffer_load_dwordx4 v[{dst+4*i}:{dst+4*i+3}], v{vaddr}, s[12:15], s{81 if i >= per else sbase} offen offset:{stride*(i % per)} {pol}")
        a("s_waitcnt vmcnt(0)")
        untag(t, dst, 4 * n, vt)
        spin_tail(label)
        a("s_mov_b64 exec, -1")

    def pipe_poll(label, issue, n, sets, x, t, vt, gap, first=0):
        for k in range(first, len(sets)):
            if k and gap: a(f"s_sleep {gap}")
            issue(sets[k])
        a("s_mov_b64 s[24:25], -1")
        def adds(r):
            if n == 4:
                for i in range(8): a(f"v_add_f32 v{r+i}, v{r+i}, v{r+8+i}")
            for i in range(4): a(f"v_add_f32 v{x+i}, v{r+i}, v{r+4+i}")
        a.label(label)
        for k, r in enumerate(sets):
            a(f"s_waitcnt vmcnt({n*(len(sets)-1)})")
            untag(t, r, 4 * n, vt)
            a(f"s_cbranch_vccz {label}D{k}")
            issue(r)
            a("s_andn2_b64 exec, s[24:25], exec\ns_andn2_b64 s[24:25], s[24:25], exec")
            adds(r)
            a("s_mov_b64 exec, s[24:25]")
        a(f"s_sub_u32 s{sSPIN}, s{sSPIN}, 1\ns_cbranch_scc0 {label}\ns_branch L_EXIT")
        for k, r in enumerate(sets):
            a.label(f"{label}D{k}")
            a("s_mov_b64 exec, s[24:25]")
            adds(r)
            if k < len(sets) - 1: a(f"s_branch {label}E")
        a.label(label + "E")
        a("s_mov_b64 exec, -1")

    def srd(d, p, nbytes):
        a(f"s_mov_b32 s{d}, s{p}\ns_mov_b32 s{d+1}, s{p+1}\ns_mov_b32 s{d+2}, {nbytes}\ns_mov_b32 s{d+3}, 0x20000")

    def stamp(i):
        if DBG: a(f"s_memrealtime s[{84+2*i}:{85+2*i}]")

    def dump_stamps():
        if not DBG: return
        if P["PWG"] >= 0:
            a(f"s_waitcnt lgkmcnt(0)\ns_cmp_lg_u32 s2, {P['PWG']}\ns_cbranch_scc1 L_PROBE_END\ns_cmp_lg_u32 s3, 1\ns_cbranch_scc1 L_PROBE_END")
            a(f"s_add_u32 s81, s{84+2*P['PST']}, 10000")
            a.label("L_PROBE")
            a("s_memrealtime s[82:83]\ns_waitcnt lgkmcnt(0)\ns_sub_u32 s82, s82, s81\ns_cmp_lt_i32 s82, 0\ns_cbranch_scc1 L_PROBE")
            a.label("L_PROBE_END")
            return
        a("s_mov_b64 exec, -1\ns_waitcnt lgkmcnt(0)")
        a(f"s_lshl_b32 s81, s2, 3\ns_add_u32 s81, s81, s3\ns_lshl_b32 s81, s81, 6\ns_add_u32 s81, s81, {WS_DBG}")
        a("s_getreg_b32 s82, hwreg(HW_REG_XCC_ID)\nv_mov_b32 v1, 0\ns_mov_b64 exec, 1")
        for i in range(9):
            a(f"v_mov_b32 v2, s{84+2*i}\nbuffer_store_dword v2, v1, s[12:15], s81 offen offset:{4*i}")
        a("v_mov_b32 v2, s82\nbuffer_store_dword v2, v1, s[12:15], s81 offen offset:60\ns_waitcnt vmcnt(0)")

    def unpack(lo, hi, src):
        a(f"v_lshlrev_b32 v{lo}, 16, v{src}\nv_and_b32 v{hi}, 0xffff0000, v{src}")

    def rnd1(x):
        a(f"v_cvt_pk_bf16_f32 v{x}, v{x}, v{x}\nv_and_b32 v{x}, 0xffff0000, v{x}")

    def dpp(op, x, ctl):
        a(f"{op}_dpp v{x}, v{x}, v{x} {ctl} row_mask:0xf bank_mask:0xf")

    def rows_allreduce(op, x, t):
        for sw in ("v_permlane16_swap_b32", "v_permlane32_swap_b32"):
            a(f"v_mov_b32 v{t}, v{x}\n{sw} v{t}, v{x}\n{op} v{x}, v{t}, v{x}")

    def quad_scatter_sum(x):
        a(f"v_permlane32_swap_b32 v{x}, v{x+2}\nv_permlane32_swap_b32 v{x+1}, v{x+3}")
        a(f"v_add_f32 v{x}, v{x}, v{x+2}\nv_add_f32 v{x+1}, v{x+1}, v{x+3}")
        a(f"v_permlane16_swap_b32 v{x}, v{x+1}\nv_add_f32 v{x}, v{x}, v{x+1}")
        dpp("v_add_f32", x, "row_ror:4"); dpp("v_add_f32", x, "row_ror:8")

    def umax_tree(t, rs):
        rs = list(rs)
        a(f"v_max3_u32 v{t}, v{rs[0]}, v{rs[1]}, v{rs[2 % len(rs)]}")
        rs = rs[3:]
        while rs:
            a(f"v_max3_u32 v{t}, v{t}, v{rs[0]}, v{rs[1 % len(rs)]}"); rs = rs[2:]

    def spin_tail(label):
        a(f"s_sub_u32 s{sSPIN}, s{sSPIN}, 1\ns_cbranch_scc1 L_EXIT\ns_cbranch_vccnz {label}")

    stamp(0)
    a("s_load_dwordx16 s[36:51], s[0:1], 0\ns_load_dwordx8 s[52:59], s[0:1], 64\ns_load_dwordx2 s[60:61], s[0:1], 96")
    a("s_cmp_lt_u32 s2, 0x100\ns_cbranch_scc1 L_LIVE\ns_waitcnt lgkmcnt(0)\ns_endpgm")
    a.label("L_LIVE")
    a("v_lshrrev_b32 v1, 6, v0\nv_and_b32 v0, 63, v0")
    if P["MAP"] == "x": a(f"s_and_b32 s{sG}, s2, 7\ns_lshr_b32 s{sS}, s2, 3")
    else: a(f"s_and_b32 s{sS}, s2, 31\ns_lshr_b32 s{sG}, s2, 5")
    a("v_readfirstlane_b32 s3, v1")
    a(f"s_mov_b32 s{sSPIN}, {SPIN}\ns_mov_b32 s{sLO}, 0x05040100\ns_mov_b32 s{sHI}, 0x07060302")
    a("s_cmp_lt_u32 s3, 4\ns_cbranch_scc1 L_STREAM")
    if CD: a("s_cmp_eq_u32 s3, 5\ns_cbranch_scc1 L_CTRL")

    hXA, hXQ, hXF, hW, hW1, hW2, hT, hA, hU = 8, 12, 20, 32, 96, 128, 24, 160, 168
    a("v_lshlrev_b32 v5, 4, v0\nv_lshrrev_b32 v1, 3, v0\nv_lshlrev_b32 v2, 5, v1\nv_and_b32 v4, 7, v0\nv_lshlrev_b32 v4, 4, v4\nv_lshl_add_u32 v3, v1, 17, v4")
    remap(P["QM"])
    a(f"s_lshr_b32 s83, s{sCS}, 3\ns_lshl_b32 s81, s83, 20\ns_lshl_b32 s82, s{sCG}, 10\ns_add_u32 s81, s81, s82\ns_and_b32 s82, s{sCS}, 7\ns_lshl_b32 s82, s82, 7\ns_add_u32 s81, s81, s82\ns_lshl_b32 s82, s83, 8")
    a("s_waitcnt lgkmcnt(0)")
    srd(4, pX, 1024); srd(16, pWQ, 4 << 20)
    a(f"buffer_load_dwordx4 v[{hXA}:{hXA+3}], v5, s[4:7], 0 offen")
    a(f"buffer_load_dwordx4 v[{hXQ}:{hXQ+3}], v2, s[4:7], s82 offen\nbuffer_load_dwordx4 v[{hXQ+4}:{hXQ+7}], v2, s[4:7], s82 offen offset:16")
    a(f"s_and_b32 s82, s2, 7\ns_lshl_b32 s82, s82, 7\nv_lshlrev_b32 v2, 4, v1\nbuffer_load_dwordx4 v[{hXF}:{hXF+3}], v2, s[4:7], s82 offen")
    for i in range(16):
        a(f"buffer_load_dwordx4 v[{hW+4*i}:{hW+4*i+3}], v3, s[16:19], s81 offen {WNT}")
        if i < 15: a("s_addk_i32 s81, 0x2000")
    a("s_branch L_HELP")

    vKO, vVO, vRD, vMK, vMAX, vL, vS, vA, vQ, vACC, vD, vT0, vT, vV = 1, 2, 3, 8, 12, 13, 16, 48, 64, 64, 80, 84, 88, 120
    assert vV + 4 * NV <= 256
    a.label("L_STREAM")
    a("s_setprio 2")
    a(f"s_lshl_b32 s81, s{sG}, 24\ns_lshl_b32 s82, s{sS}, 19\ns_add_u32 s81, s81, s82\ns_lshl_b32 s82, s3, 10\ns_add_u32 s81, s81, s82")
    a(f"v_lshlrev_b32 v{vVO}, 4, v0\nv_lshrrev_b32 v7, 4, v0\nv_lshlrev_b32 v14, 6, v7\nv_xor_b32 v{vKO}, v14, v{vVO}")
    a(f"v_add_u32 v{vVO}, s81, v{vVO}\nv_add_u32 v{vKO}, s81, v{vKO}")
    a(f"s_mov_b32 s{sMSK}, 0x7ffff\ns_mul_i32 s{sKP}, s2, {ROT*1024}\ns_and_b32 s{sKP}, s{sKP}, s{sMSK}\ns_mov_b32 s{sVP}, s{sKP}")
    a(f"s_mul_i32 s{sLB}, s3, {RING}")
    a("s_waitcnt lgkmcnt(0)")
    srd(8, pV, 128 << 20); srd(4, pK, 128 << 20)

    seq = [("V", i) for i in range(NP)] + [("K", i) for i in range(128)] + [("V", i) for i in range(NP, 128)]
    WOP = P["WOP"]
    if WOP:
        assert vV + 4 * NV <= 240
        seq = seq[:len(seq) - WOP] + [("W", i) for i in range(4)] + seq[len(seq) - WOP:]
    pos = {x: n for n, x in enumerate(seq)}
    st = dict(rd=0, mf=0, sel=0, rnd=0, sm=0, perm=0, ap=0, pv=0, q=False, landed=-1, setup=0)
    vslot = lambda vi: vV + 4 * (vi % NV)

    def setup_pieces():
        def p0():
            a("v_and_b32 v14, 3, v0\nv_bfe_u32 v15, v0, 2, 2")
            a(f"v_mul_u32_u24 v{vRD}, {SLOT}, v14\nv_lshl_add_u32 v{vRD}, v15, 8, v{vRD}\nv_lshl_add_u32 v{vRD}, v7, 4, v{vRD}\nv_add_u32 v{vRD}, s{sLB}, v{vRD}")
            for ks in (3, 2, 1, 0):
                a(f"v_xor_b32 v{vT0}, {ks}, v15\nv_lshl_add_u32 v{vRD+ks}, v{vT0}, 6, v{vRD}")
        def p1():
            for i in range(4):
                m = 0x11111111 << i
                a(f"s_mov_b32 s{sCLS+2*i}, {hex(m)}\ns_mov_b32 s{sCLS+2*i+1}, {hex(m)}")
                a(f"v_cndmask_b32 v{vMK+i}, 0, -1, s[{sCLS+2*i}:{sCLS+2*i+1}]")
            a(f"v_mov_b32 v{vMAX}, 0xff800000\nv_mov_b32 v{vL}, 0")
        def p2():
            srd(12, pWS, WS_BYTES); srd(16, pWO, 4 << 20); srd(20, pOUT, 1024)
            load_epoch()
            a(f"v_lshlrev_b32 v15, 8, v15\nv_lshl_add_u32 v15, v7, 4, v15\nv_add_u32 v15, {L_Q}, v15")
            if CD: a(f"s_lshl_b32 s81, s3, 8\ns_add_u32 s81, s81, {L_PR}\nv_lshl_add_u32 v248, v0, 2, s81")
        return [p0, p1, p2]
    setup = setup_pieces()

    def tile_dst(T):
        b = T // 2
        return (b % 4), vS + 8 * (b // 4) + 4 * (T % 2)

    def k_sel(T):
        t, dst = tile_dst(T)
        if t == 0: return 0
        for i in range(4):
            a(f"v_cndmask_b32 v{dst+i}, v{dst+i}, v{vD+i}, s[{sCLS+2*t}:{sCLS+2*t+1}]")
        return 16

    def k_mfma(T):
        t, dst = tile_dst(T)
        d = dst if t == 0 else vD
        a("s_waitcnt lgkmcnt(0)")
        for ks in range(4):
            c = "0" if ks == 0 else f"v[{d}:{d+3}]"
            a(f"v_mfma_f32_16x16x32_bf16 v[{d}:{d+3}], v[{vA+4*ks}:{vA+4*ks+3}], v[{vQ+4*ks}:{vQ+4*ks+3}], {c}")
        return 64

    def k_read(T):
        off = ((4 * T) % R) * SLOT
        for ks in range(4):
            a(f"ds_read_b128 v[{vA+4*ks}:{vA+4*ks+3}], v{vRD+ks} offset:{off}")
        return 24

    def k_round(j):
        x = vS + 4 * j
        if P["NORND"]:
            for i in range(4): a(f"v_mul_f32 v{x+i}, 0x3db504f3, v{x+i}")
            a(f"v_max3_f32 v{vMAX}, v{vMAX}, v{x}, v{x+1}\nv_max3_f32 v{vMAX}, v{vMAX}, v{x+2}, v{x+3}")
            return 30
        a(f"v_cvt_pk_bf16_f32 v{vT0}, v{x}, v{x+1}\nv_cvt_pk_bf16_f32 v{vT0+1}, v{x+2}, v{x+3}")
        unpack(x, x + 1, vT0); unpack(x + 2, x + 3, vT0 + 1)
        for i in range(4): a(f"v_mul_f32 v{x+i}, 0x3db504f3, v{x+i}")
        a(f"v_cvt_pk_bf16_f32 v{vT0}, v{x}, v{x+1}\nv_cvt_pk_bf16_f32 v{vT0+1}, v{x+2}, v{x+3}")
        unpack(x, x + 1, vT0); unpack(x + 2, x + 3, vT0 + 1)
        a(f"v_max3_f32 v{vMAX}, v{vMAX}, v{x}, v{x+1}\nv_max3_f32 v{vMAX}, v{vMAX}, v{x+2}, v{x+3}")
        return 80

    def softmax(j):
        if j == 0:
            dpp("v_max_f32", vMAX, "quad_perm:[1,0,3,2]"); dpp("v_max_f32", vMAX, "quad_perm:[2,3,0,1]")
            rows_allreduce("v_max_f32", vMAX, vT0)
            for i in range(8): a(f"v_mov_b32 v{vACC+i}, 0")
            stamp(2)
            return 100
        if j <= 8:
            x = vS + 4 * (j - 1)
            for i in range(4): a(f"v_sub_f32 v{x+i}, v{x+i}, v{vMAX}")
            for i in range(4): a(f"v_mul_f32 v{x+i}, 0x3fb8aa3b, v{x+i}")
            for i in range(4): a(f"v_exp_f32 v{x+i}, v{x+i}")
            a(f"v_add_f32 v{vT0}, v{x}, v{x+1}\nv_add_f32 v{vT0+1}, v{x+2}, v{x+3}")
            dst = vS + 8 * ((j - 1) // 2) + 2 * ((j - 1) % 2)
            a(f"v_cvt_pk_bf16_f32 v{dst}, v{x}, v{x+1}\nv_cvt_pk_bf16_f32 v{dst+1}, v{x+2}, v{x+3}")
            a(f"v_add_f32 v{vL}, v{vL}, v{vT0}\nv_add_f32 v{vL}, v{vL}, v{vT0+1}")
            return 100
        dpp("v_add_f32", vL, "quad_perm:[1,0,3,2]"); dpp("v_add_f32", vL, "quad_perm:[2,3,0,1]")
        rows_allreduce("v_add_f32", vL, vT0)
        a(f"v_min_u32 v{vMAX}, -2, v{vMAX}\nv_min_u32 v{vL}, -2, v{vL}")
        a(f"s_lshl_b32 s81, s3, 5\ns_add_u32 s81, s81, {L_ML}\nv_lshl_add_u32 v{vT0}, v0, 1, s81")
        a(f"s_mov_b64 exec, 0x1111\nds_write_b64 v{vT0}, v[{vMAX}:{vMAX+1}]\ns_mov_b64 exec, -1")
        return 100

    def v_perm(pr):
        ra, rb, p = vslot(2 * pr), vslot(2 * pr + 1), pr % 4
        for q in range(4):
            a(f"v_perm_b32 v{vT+8*q+p}, v{rb+q}, v{ra+q}, s{sLO}\nv_perm_b32 v{vT+8*q+4+p}, v{rb+q}, v{ra+q}, s{sHI}")
        return 32

    def a_prep(b):
        t, src = b % 4, vS + 8 * (b // 4)
        for i in range(4):
            for p in range(4):
                a(f"v_and_b32_dpp v{vA+4*i+p}, v{src+p}, v{vMK+i} quad_perm:[{t},{t},{t},{t}] row_mask:0xf bank_mask:0xf")
        return 64

    def pv_mfma(h):
        jj = h % 2
        for i in range(4):
            j = 4 * jj + i
            d = f"v[{vACC+4*jj}:{vACC+4*jj+3}]"
            a(f"v_mfma_f32_16x16x32_bf16 {d}, v[{vA+4*i}:{vA+4*i+3}], v[{vT+4*j}:{vT+4*j+3}], {d}")
        return 64

    def work(budget):
        spent = 0
        landed = lambda x: pos[x] <= st["landed"]
        if st["setup"] < len(setup):
            setup[st["setup"]](); st["setup"] += 1
            return 60
        if st["sel"] < st["mf"]:
            spent += k_sel(st["sel"]) + 1; st["sel"] += 1
        if st["q"] and st["mf"] < st["rd"]:
            spent += k_mfma(st["mf"]); st["mf"] += 1
        if st["rd"] < 32 and st["rd"] == st["mf"] and landed(("K", 4 * st["rd"] + 3)):
            spent += k_read(st["rd"]); st["rd"] += 1
        while spent < budget:
            if st["rnd"] < 8 and st["sel"] >= 8 * (st["rnd"] // 2) + 7 + st["rnd"] % 2:
                spent += k_round(st["rnd"]); st["rnd"] += 1
            elif st["pv"] < 32 and st["ap"] > st["pv"] // 2 and st["perm"] >= 4 * (st["pv"] // 2 + 1):
                spent += pv_mfma(st["pv"]); st["pv"] += 1
            elif st["ap"] < 16 and st["pv"] == 2 * st["ap"] and st["sm"] >= 3 + 2 * (st["ap"] // 4):
                spent += a_prep(st["ap"]); st["ap"] += 1
            elif st["perm"] < 64 and st["pv"] >= 2 * (st["perm"] // 4) and landed(("V", 2 * st["perm"] + 1)):
                spent += v_perm(st["perm"]); st["perm"] += 1
            elif st["rnd"] == 8 and st["sm"] < 10:
                spent += softmax(st["sm"]); st["sm"] += 1
            else:
                break
        return spent

    forced = 0
    for n, (kind, i) in enumerate(seq):
        if kind == "W":
            if n - D > st["landed"]:
                a(f"s_waitcnt vmcnt({D-1})"); st["landed"] = n - D
            a(f"s_mov_b32 s81, {4096*i}\nbuffer_load_dwordx4 v[{240+4*i}:{243+4*i}], v{vKO}, s[16:19], s81 offen {WNT}")
            work(BUD)
            continue
        free = (lambda: i < R or (i - R) // 4 < st["mf"]) if kind == "K" else (lambda: i < NV or (i - NV) // 2 < st["perm"])
        while not free():
            assert work(1) > 0, (n, kind, i, st)
            forced += 1
        sp = sKP if kind == "K" else sVP
        if kind == "K":
            a(f"s_mov_b32 m0, s{sLB}" if i % R == 0 else f"s_addk_i32 m0, {SLOT}")
        Dn = P["DE"] if n >= len(seq) - P["DEN"] else D
        if n < P["DIN"]: Dn = P["DI"]
        if P["DP"]: Dn = int(str(P["DP"])[n % len(str(P["DP"]))])
        if CD and n >= R:
            if n % 4 == 0: a(f"v_mov_b32 v249, {n}\nds_write_b32 v248, v249\nds_read_b32 v250, v248 offset:1024")
            if n % 4 == 1: a("s_waitcnt lgkmcnt(0)\nv_cmp_lt_i32 vcc, v249, v250")
            if n > R + 1:
                a(f"s_cbranch_vccnz L_F{n}\ns_waitcnt vmcnt({D-1})")
                a.label(f"L_F{n}")
                Dn = CD
        if P["AD"] and n >= P["AB"]:
            if n % 4 == 0: a("s_memrealtime s[26:27]")
            if n % 4 == 1: a(f"s_waitcnt lgkmcnt(0)\ns_sub_u32 s26, s26, s84\ns_cmp_gt_u32 s26, {P['A0'] + P['A1'] * n // 10}\ns_cselect_b64 vcc, -1, 0")
            if n > P["AB"] + 1:
                a(f"s_cbranch_vccnz L_F{n}\ns_waitcnt vmcnt({D-1})")
                a.label(f"L_F{n}")
                Dn = P["AD"]
        if n - Dn > st["landed"]:
            a(f"s_waitcnt vmcnt({Dn-1})"); st["landed"] = n - Dn
        if kind == "K":
            a(f"buffer_load_dwordx4 v{vKO}, s[4:7], s{sp} offen {NT} lds")
        else:
            r = vslot(i)
            a(f"buffer_load_dwordx4 v[{r}:{r+3}], v{vVO}, s[8:11], s{sp} offen {NT}")
        a(f"s_addk_i32 s{sp}, 0x1000\ns_and_b32 s{sp}, s{sp}, s{sMSK}")
        if (kind, i) == ("K", R - 1):
            assert st["setup"] == len(setup)
            stamp(7)
            a("s_barrier")
            stamp(1)
            for ks in range(4):
                a(f"ds_read_b128 v[{vQ+4*ks}:{vQ+4*ks+3}], v15 offset:{64*ks}")
            st["q"] = True
        if n == len(seq) - P["MLPOS"]:
            a(f"v_mov_b32 v14, {L_GO}\ns_mov_b64 exec, 1\nds_write_b32 v14, v14\ns_mov_b64 exec, -1")
        if n == len(seq) - max(12, WOP + 6):
            assert st["sm"] == 10
            make_tags(vD)
            remap(P["CM"])
            a(f"s_lshl_b32 s81, s{sCG}, 19\ns_lshr_b32 s82, s{sCS}, 2\ns_lshl_b32 s82, s82, 16\ns_add_u32 s81, s81, s82")
            a(f"s_lshl_b32 s82, s3, 14\ns_add_u32 s81, s81, s82\ns_and_b32 s82, s{sCS}, 3\ns_lshl_b32 s82, s82, 8\ns_add_u32 s81, s81, s82")
            a(f"v_and_b32 v14, 15, v0\nv_lshlrev_b32 v14, 4, v14\nv_lshl_add_u32 v14, v7, 10, v14\nv_add_u32 v{vKO}, s81, v14")
            if P["PF"]:
                a(f"s_xor_b32 s81, s81, {(P['PF'] >> 2) << 16}\nv_and_b32 v254, 1, v0\nv_lshlrev_b32 v254, 7, v254\nv_lshrrev_b32 v15, 1, v0")
                a("v_lshl_add_u32 v253, v15, 10, v254\nv_add_u32 v253, s81, v253\nv_and_b32 v15, 3, v15\nv_lshl_add_u32 v254, v15, 10, v254")
                a("v_lshrrev_b32 v15, 3, v0\nv_lshl_add_u32 v254, v15, 13, v254")
            a(f"s_lshl_b32 s81, s{sCG}, 18\ns_lshr_b32 s83, s{sCS}, 3\ns_lshl_b32 s83, s83, 16\ns_add_u32 s81, s81, s83\ns_add_u32 s81, s81, s82")
            a(f"s_and_b32 s83, s{sCS}, 4\ns_lshl_b32 s83, s83, 10\ns_add_u32 s81, s81, s83\ns_lshl_b32 s83, s3, 14\ns_add_u32 s81, s81, s83\nv_add_u32 v251, s81, v14")
            if P["PF"]: a(f"s_xor_b32 s81, s81, {(P['PF'] >> 3) << 16}\nv_add_u32 v254, s81, v254")
            srd(4, pW2, 1792 * 1024)
            a(f"s_lshl_b32 s81, s3, 4\ns_add_u32 s81, s81, {L_H}\nv_lshl_add_u32 v252, v7, 2, s81")
            a(f"v_lshlrev_b32 v6, 4, v0\nv_add_u32 v3, s{sLB}, v6")
            a("v_and_b32 v14, 1, v0\nv_lshlrev_b32 v14, 10, v14\nv_lshrrev_b32 v15, 1, v0\nv_lshl_add_u32 v4, v15, 4, v14\ns_lshl_b32 s81, s3, 8\nv_add_u32 v4, s81, v4")
            if P["L1"]:
                a(f"s_lshl_b32 s81, s{sG}, 16\ns_lshl_b32 s82, s3, 14\ns_add_u32 s82, s82, s81\ns_lshl_b32 s83, s{sS}, 8\ns_add_u32 s82, s82, s83")
                a("v_and_b32 v14, 15, v0\nv_lshlrev_b32 v14, 4, v14\nv_lshl_add_u32 v5, v7, 13, v14\nv_add_u32 v5, s82, v5")
                a(f"s_lshl_b32 s81, s{sCG}, 16\ns_lshr_b32 s82, s{sCS}, 2\ns_lshl_b32 s82, s82, 13\ns_add_u32 s82, s82, s81\ns_lshl_b32 s81, s3, 6\ns_add_u32 s82, s82, s81")
                a("v_lshrrev_b32 v14, 2, v0\nv_lshlrev_b32 v14, 8, v14\nv_and_b32 v15, 3, v0\nv_lshl_add_u32 v6, v15, 4, v14\nv_add_u32 v6, s82, v6\ns_movk_i32 s29, 0x1000")
            else:
                a(f"s_lshl_b32 s81, s{sG}, 16\ns_lshl_b32 s82, s3, 14\ns_add_u32 s82, s82, s81\ns_lshl_b32 s83, s{sS}, 6\ns_add_u32 s82, s82, s83")
                a("v_lshrrev_b32 v14, 2, v0\nv_lshlrev_b32 v14, 11, v14\nv_and_b32 v15, 3, v0\nv_lshl_add_u32 v5, v15, 4, v14\nv_add_u32 v5, s82, v5")
                a(f"s_lshl_b32 s81, s{sCG}, 16\ns_and_b32 s82, s{sCS}, 28\ns_add_u32 s82, s82, s3\ns_lshl_b32 s82, s82, 11\ns_add_u32 s82, s82, s81\nv_add_u32 v6, s82, v6")
                a("s_movk_i32 s29, 0x400")
        elif n >= max(D, P["DI"]) - 1:
            work(BUD)
    vW = [vslot(128 + i) for i in range(6)]
    assert (128 + 5 - NV) // 2 < st["perm"]
    WOL = P["WOL"]
    def tile_loads(first, last):
        for i in range(first, last):
            if i < 4: a(f"s_movk_i32 s81, {4096*i}\nbuffer_load_dwordx4 v[{vW[i]}:{vW[i]+3}], v{vKO}, s[16:19], s81 offen {P['TNT']}")
            else: a(f"s_movk_i32 s81, {8192*(i-4)}\nbuffer_load_dwordx4 v[{vW[i]}:{vW[i]+3}], v251, s[4:7], s81 offen {P['TNT']}")
    def touch():
        a(f"s_mov_b32 exec_hi, 0\nbuffer_load_dword v160, v253, s[16:19], 0 offen {P['PNT']}")
        a(f"s_mov_b32 exec_lo, 0xffff\nbuffer_load_dword v161, v254, s[4:7], 0 offen {P['PNT']}\ns_mov_b64 exec, -1")
    NW = (6, 0, 0, 4, 2, 0, 6)[WOL]
    if WOL == 6:
        a(f"v_cmp_lt_i32 vcc, {P['TW']}, v250")
        a.settle()
        a("s_cbranch_vccz L_TE")
    tile_loads(0, NW)
    if WOL == 6: a.label("L_TE")
    a(f"s_lshl_b32 s81, s3, 4\ns_add_u32 s81, s81, {L_FAC}\nv_mov_b32 v7, s81")
    n = len(seq)
    while work(10**6): pass
    while st["landed"] < n - 1:
        st["landed"] += 1
        left = n - 1 - st["landed"]
        paced = WOL == 5 and 0 < left < P["DW"]
        if seq[st["landed"]][1] % 2 == 1 or paced:
            a(f"s_waitcnt vmcnt({left + NW})")
            if WOL == 6:
                a(f"s_cbranch_vccnz L_TL{left}\ns_waitcnt vmcnt({left})")
                if left == 0: tile_loads(0, 6)
                a.label(f"L_TL{left}")
            if paced:
                tile_loads(NW, NW + 1); NW += 1
            if left == 0:
                stamp(3)
                if WOL != 2: tile_loads(NW, 6)
            while work(10**6): pass
    assert st["pv"] == 32 and st["sm"] == 10

    def hold():
        a("s_waitcnt lgkmcnt(0)\ns_add_u32 s81, s84, 4800")
        a.label("L_HOLD")
        a("s_sleep 8\ns_memrealtime s[26:27]\ns_waitcnt lgkmcnt(0)\ns_sub_u32 s26, s26, s81\ns_cmp_lt_i32 s26, 0\ns_cbranch_scc1 L_HOLD")
    if P["NOTAIL"] == 1: hold()
    a(f"ds_write_b128 v3, v[{vACC}:{vACC+3}]\nds_write_b128 v3, v[{vACC+4}:{vACC+7}] offset:1024")
    if P["PF"] and not P["PFL"]: touch()
    a("s_waitcnt lgkmcnt(0)\ns_barrier")
    a("s_mov_b32 exec_lo, -1\ns_mov_b32 exec_hi, 0")
    if LOC: a(f"ds_read_b32 v15, v7 offset:{L_LOC - L_FAC}")
    a(f"ds_read_b128 v[16:19], v7")
    for w in range(4):
        if w == 2: a(f"v_add_u32 v14, {2*RING}, v4")
        a(f"ds_read_b128 v[{20+4*w}:{23+4*w}], v{4 if w < 2 else 14} offset:{(w % 2)*RING}")
    a("s_waitcnt lgkmcnt(3)")
    if LOC: a("v_readfirstlane_b32 s67, v15")
    for i in range(4): a(f"v_mul_f32 v{20+i}, v16, v{20+i}")
    for w in range(1, 4):
        a(f"s_waitcnt lgkmcnt({3-w})")
        for i in range(4): a(f"v_fmac_f32 v{20+i}, v{16+w}, v{20+4*w+i}")
    if LOC: a("s_cmp_eq_u32 s67, 0")
    tag4(20, vD)
    if LOC:
        a(f"s_cbranch_scc1 L_ST1X\nbuffer_store_dwordx4 v[20:23], v5, s[12:15], 0 offen {P['PLS']}")
        a.label("L_ST1D")
    else: a(f"buffer_store_dwordx4 v[20:23], v5, s[12:15], 0 offen {P['P1S']}")
    a("s_mov_b64 exec, -1")
    stamp(4)
    if WOL == 2: tile_loads(0, 6)
    if P["PF"] and P["PFL"]: touch()
    a("ds_read_b32 v18, v252\nv_mov_b32 v19, 0")
    if P["NOTAIL"] == 2: hold()
    def issue1(r):
        a(f"buffer_load_dwordx4 v[{r}:{r+3}], v6, s[12:15], 0 offen {P['P1L']}\nbuffer_load_dwordx4 v[{r+4}:{r+7}], v6, s[12:15], s29 offen {P['P1L']}")
    issue1(144 if P["G1"] else 24)
    a(f"v_lshlrev_b32 v3, 5, v0\ns_add_u32 s81, s{sLB}, 4096\nv_add_u32 v3, s81, v3")
    a("v_lshrrev_b32 v14, 3, v0\nv_lshlrev_b32 v4, 7, v14\nv_and_b32 v15, 3, v0\nv_lshl_add_u32 v4, v15, 5, v4\nv_bfe_u32 v14, v0, 2, 1\nv_lshl_add_u32 v4, v14, 4, v4")
    a(f"s_and_b32 s81, s{sCS}, 3\ns_lshl_b32 s81, s81, 15\ns_lshl_b32 s82, s{sCG}, 3\ns_lshr_b32 s83, s{sCS}, 2\ns_add_u32 s82, s82, s83\ns_lshl_b32 s82, s82, {9 if P['L2'] else 6}\ns_add_u32 s81, s81, s82\ns_add_u32 s81, s81, {WS_O2}")
    if P["L2"]: a("v_lshl_add_u32 v1, v0, 4, s81")
    else: a("v_lshrrev_b32 v14, 2, v0\nv_lshlrev_b32 v14, 12, v14\nv_lshl_add_u32 v14, v15, 4, v14\nv_add_u32 v1, s81, v14")
    a(f"v_add_u32 v2, {2*RING}, v4")
    if LOC:
        a(f"s_and_b32 s81, s{sG}, 1\ns_lshl_b32 s81, s81, 4\ns_lshl_b32 s81, 0xffff, s81\ns_and_b32 s67, s67, s81")
        a(f"s_lshr_b32 s81, s{sG}, 1\ns_and_b32 s82, s{sS}, 3\ns_cmp_eq_u32 s81, s82\ns_cselect_b32 s67, s67, 0")
        if not P["LO2"]: a("s_mov_b32 s67, 0")
    for j in range(8): a(f"v_mov_b32 v{vT+4*j+3}, 0")
    a(f"s_waitcnt vmcnt({(2 if WOL == 2 else 3) + (2 if P['PF'] and (WOL != 2 or P['PFL']) else 0)}) lgkmcnt(0)")
    for q in range(4):
        for p in range(3):
            a(f"v_perm_b32 v{vT+8*q+p}, v{vW[2*p+1]+q}, v{vW[2*p]+q}, s{sLO}\nv_perm_b32 v{vT+8*q+4+p}, v{vW[2*p+1]+q}, v{vW[2*p]+q}, s{sHI}")
    if P["G1"]:
        pipe_poll("L_P1", issue1, 2, [144 + 8 * k for k in range(P["G1"])], 24, 14, vD, P["Z1"], 1)
        stamp(5)
    else:
        a("s_branch L_P1CHK")
        a.label("L_P1")
        if P["S1"]: a(f"s_sleep {P['S1']}")
        a(f"buffer_load_dwordx4 v[24:27], v6, s[12:15], 0 offen {P['P1L']}\nbuffer_load_dwordx4 v[28:31], v6, s[12:15], s29 offen {P['P1L']}")
        a.label("L_P1CHK")
        a("s_waitcnt vmcnt(0)")
        untag(14, 24, 8, vD)
        spin_tail("L_P1")
        a("s_mov_b64 exec, -1")
        stamp(5)
        for i in range(4): a(f"v_add_f32 v{24+i}, v{24+i}, v{28+i}")
    quad_scatter_sum(24)
    for i in range(4):
        a(f"v_mov_b32_dpp v{28+i}, v24 quad_perm:[{i},{i},{i},{i}] row_mask:0xf bank_mask:0xf")
    a("v_cvt_pk_bf16_f32 v16, v28, v29\nv_cvt_pk_bf16_f32 v17, v30, v31")
    for j in range(8):
        a(f"v_mfma_f32_16x16x32_bf16 v[{32+4*j}:{35+4*j}], v[16:19], v[{vT+4*j}:{vT+4*j+3}], 0")
    a("s_mov_b64 exec, 0xffff")
    for j in range(0, 8, 2):
        a(f"ds_write2_b32 v3, v{32+4*j}, v{36+4*j} offset0:{j} offset1:{j+1}")
    a("s_waitcnt lgkmcnt(0)\ns_barrier")
    a("s_cmp_lg_u32 s3, 0\ns_cbranch_scc1 L_FINAL")
    a("s_mov_b32 exec_lo, -1\ns_mov_b32 exec_hi, 0")
    for w in range(4):
        a(f"ds_read_b128 v[{20+4*w}:{23+4*w}], v{4 if w < 2 else 2} offset:{(w % 2)*RING+4096}")
    for w in range(1, 4):
        a(f"s_waitcnt lgkmcnt({3-w})")
        for i in range(4): a(f"v_add_f32 v{20+i}, v{20+i}, v{20+4*w+i}")
    tag4(20, vD)
    if LOC: a("s_not_b32 exec_lo, s67")
    a(f"buffer_store_dwordx4 v[20:23], v1, s[12:15], 0 offen {P['P2S']}")
    stamp(6)
    if LOC: a(f"s_cmp_eq_u32 s67, 0\ns_cbranch_scc1 L_EXIT\ns_mov_b32 exec_lo, s67\nbuffer_store_dwordx4 v[20:23], v1, s[12:15], 0 offen {P['PLS']}")
    a("s_branch L_EXIT")
    if LOC:
        a.label("L_ST1X")
        a(f"buffer_store_dwordx4 v[20:23], v5, s[12:15], 0 offen {P['P1S']}\ns_branch L_ST1D")

    a.label("L_FINAL")
    a("s_cmp_lg_u32 s3, 1\ns_cbranch_scc1 L_EXIT\ns_cmp_lt_u32 s2, 224\ns_cbranch_scc1 L_EXIT")
    a("s_mov_b64 exec, -1")
    final_index()
    a(f"s_lshl_b32 s29, s{sF}, 12\ns_add_u32 s29, s29, {WS_O2}\nv_lshlrev_b32 v6, 4, v0\nv_lshlrev_b32 v7, 2, v0\nv_add_u32 v7, {L_FIN}, v7")
    a("ds_read_b32 v16, v7")
    a("v_lshrrev_b32 v14, 4, v0\nv_lshlrev_b32 v14, 1, v14\nv_lshl_add_u32 v5, v15, 4, v14")
    if P["L2"]:
        a(f"s_lshr_b32 s29, s{sF}, 3\ns_lshl_b32 s29, s29, 15\ns_and_b32 s83, s{sF}, 7\ns_lshl_b32 s83, s83, 6\ns_add_u32 s29, s29, s83\ns_add_u32 s29, s29, {WS_O2}")
        a("v_lshrrev_b32 v6, 2, v0\nv_lshlrev_b32 v6, 9, v6\nv_lshl_add_u32 v6, v15, 4, v6")
    if P["X2"] == 2:
        hold(); stamp(5)
    if P["G2"]:
        assert P["L2"]
        a("s_add_u32 s26, s29, 8192\ns_add_u32 s27, s29, 16384\ns_add_u32 s81, s29, 24576")
        def issue2(r):
            for i, sb in enumerate((29, 26, 27, 81)): a(f"buffer_load_dwordx4 v[{r+4*i}:{r+4*i+3}], v6, s[12:15], s{sb} offen {P['P2L']}")
        pipe_poll("L_P2", issue2, 4, [176 + 16 * k for k in range(P["G2"])], 24, 14, vD, P["Z2"])
        stamp(6)
    else:
        gather("L_P2", 24, 4, 29, 6, 14, vD, P["S2"], 8192 if P["L2"] else 1024, P["P2L"])
        stamp(6)
        for i in range(8): a(f"v_add_f32 v{24+i}, v{24+i}, v{32+i}")
        for i in range(4): a(f"v_add_f32 v{24+i}, v{24+i}, v{28+i}")
    quad_scatter_sum(24)
    a("s_waitcnt lgkmcnt(0)")
    a("v_add_f32 v24, v16, v24\nv_cvt_pk_bf16_f32 v24, v24, v24")
    a("s_mov_b32 exec_lo, 0x000f000f\ns_mov_b32 exec_hi, 0x000f000f")
    a("buffer_store_short v24, v5, s[20:23], s82 offen")
    a(f"s_cmp_lg_u32 s2, 224\ns_cbranch_scc1 L_NOE\ns_mov_b64 exec, 1\nv_mov_b32 v24, s{sE}\nv_mov_b32 v5, {WS_E}\nbuffer_store_dword v24, v5, s[12:15], 0 offen")
    a.label("L_NOE")
    if DBG: a("s_waitcnt vmcnt(0)")
    a.label("L_EXIT")
    if P["G1"] or P["G2"] or P["X2"]: a("s_waitcnt vmcnt(0)")
    stamp(8)
    dump_stamps()
    a("s_endpgm")

    a.label("L_HELP")
    srd(12, pWS, WS_BYTES)
    load_epoch()
    a(f"v_mov_b32 v{hA}, -1\nv_mov_b32 v{hA+1}, -1\nv_lshrrev_b32 v7, 4, v0")
    a(f"v_lshlrev_b32 v6, 3, v0\nv_add_u32 v6, {L_ML}, v6\ns_mov_b64 exec, 0x1ffff\nds_write_b64 v6, v[{hA}:{hA+1}]\ns_mov_b64 exec, -1")
    a("s_waitcnt vmcnt(19)")
    vM, vR, vX = 200, 201, 202
    for i in range(4): unpack(hU + 2 * i, hU + 2 * i + 1, hXA + i)
    def allsum(x, t):
        for r in (1, 2, 4, 8): dpp("v_add_f32", x, f"row_ror:{r}")
        rows_allreduce("v_add_f32", x, t)
    a(f"v_add_f32 v{vM}, v{hU}, v{hU+1}")
    for i in range(2, 8): a(f"v_add_f32 v{vM}, v{vM}, v{hU+i}")
    allsum(vM, vX)
    a(f"v_mul_f32 v{vM}, 0x3b000000, v{vM}")
    for i in range(8): a(f"v_sub_f32 v{hU+i}, v{hU+i}, v{vM}")
    a(f"v_mul_f32 v{vR}, v{hU}, v{hU}")
    for i in range(1, 8): a(f"v_fmac_f32 v{vR}, v{hU+i}, v{hU+i}")
    allsum(vR, vX)
    a(f"v_mul_f32 v{vR}, 0x3b000000, v{vR}")
    rnd1(vM); rnd1(vR)
    a(f"v_add_f32 v{vR}, 0x3727c5ac, v{vR}"); rnd1(vR)
    a(f"v_sqrt_f32 v{vR}, v{vR}"); rnd1(vR)
    a(f"v_rcp_f32 v{vR}, v{vR}")

    def normalise(x, n):
        for i in range(n): unpack(hU + 2 * i, hU + 2 * i + 1, x + i)
        for i in range(2 * n): a(f"v_sub_f32 v{hU+i}, v{hU+i}, v{vM}")
        for i in range(n): a(f"v_cvt_pk_bf16_f32 v{x+i}, v{hU+2*i}, v{hU+2*i+1}")
        for i in range(n): unpack(hU + 2 * i, hU + 2 * i + 1, x + i)
        for i in range(2 * n): a(f"v_mul_f32 v{hU+i}, v{hU+i}, v{vR}")
        for i in range(n): a(f"v_cvt_pk_bf16_f32 v{x+i}, v{hU+2*i}, v{hU+2*i+1}")

    def gemv(acc, w, npair, xsrc, tmp, waits=None):
        for p in range(npair):
            if waits: a(f"s_waitcnt vmcnt({waits(p)})")
            ra, rb = w + 8 * p, w + 8 * p + 4
            for q in range(4):
                a(f"v_perm_b32 v{tmp+2*q}, v{rb+q}, v{ra+q}, s{sLO}\nv_perm_b32 v{tmp+2*q+1}, v{rb+q}, v{ra+q}, s{sHI}")
            for j in range(8):
                a(f"v_dot2_f32_bf16 v{acc+j}, v{tmp+j}, {xsrc(p)}, {'0' if p == 0 else f'v{acc+j}'}")

    def publish64(x, soff):
        for j in range(4): a(f"v_permlane32_swap_b32 v{x+j}, v{x+4+j}")
        for j in range(4): a(f"v_add_f32 v{x+j}, v{x+j}, v{x+4+j}")
        for j in range(4): a(f"v_mov_b32 v{x+4+j}, v{x+j}")
        for j in range(4): a(f"v_permlane16_swap_b32 v{x+j}, v{x+4+j}")
        for j in range(4): a(f"v_add_f32 v{x+j}, v{x+j}, v{x+4+j}")
        for j in range(4): dpp("v_add_f32", x + j, "row_ror:8")
        tag4(x, hT)
        a(f"s_mov_b32 exec_lo, 0xff\ns_mov_b32 exec_hi, 0xff\nbuffer_store_dwordx4 v[{x}:{x+3}], v2, s[12:15], s{soff} offen sc1\ns_mov_b64 exec, -1")

    a("s_waitcnt vmcnt(16) lgkmcnt(0)")
    normalise(hXQ, 8)
    make_tags(hT)
    a("v_lshrrev_b32 v2, 5, v0\nv_lshl_add_u32 v2, v2, 7, v4")
    a(f"s_lshl_b32 s29, s{sG}, 13\ns_add_u32 s29, s29, {WS_Q}\ns_lshl_b32 s82, s{sCS}, 8\ns_lshl_b32 s83, s{sCG}, 13\ns_add_u32 s82, s82, s83\ns_add_u32 s82, s82, {WS_Q}")
    gemv(hA, hW, 8, lambda p: f"v{hXQ+p}", hU, lambda p: 14 - 2 * p)
    publish64(hA, 82)
    stamp(1)

    def mlp_first():
        a("s_cmp_ge_u32 s2, 224\ns_cbranch_scc1 L_NOW1")
        srd(4, pW1, 512 * 3584)
        a(f"s_and_b32 s81, s2, 7\ns_mul_i32 s81, s81, {64*3584}\ns_lshr_b32 s83, s2, 3\ns_lshl_b32 s83, s83, 7\ns_add_u32 s81, s81, s83")
        a("v_mul_u32_u24 v3, 28672, v1\nv_add_u32 v3, v3, v4")
        for e in range(8):
            a(f"buffer_load_dwordx4 v[{hW1+4*e}:{hW1+4*e+3}], v3, s[4:7], s81 offen {WNT}")
            if e < 7: a("s_addk_i32 s81, 3584")
        normalise(hXF, 4)
        a(f"s_lshl_b32 s82, s2, 8\ns_add_u32 s82, s82, {WS_H}")
        gemv(hA, hW1, 4, lambda p: f"v{hXF+p}", hU, lambda p: 6 - 2 * p)
        if not P["NOH"]: publish64(hA, 82)
        a.settle()
        a.label("L_NOW1")
        stamp(4)

    if not P["W1L"]: mlp_first()

    a(f"v_lshlrev_b32 v3, 7, v7\nv_add_u32 v3, v3, v4\nv_bfe_u32 v6, v0, 3, 1\nv_lshl_add_u32 v3, v6, 3, v3\nv_add_u32 v3, {L_Q}, v3")
    gather("L_H0", hW, 8, 29, 5, vX, hT, P["QSLEEP"])
    stamp(2)
    for j in range(16): a(f"v_add_f32 v{hW+j}, v{hW+j}, v{hW+16+j}")
    for j in range(8): a(f"v_add_f32 v{hW+j}, v{hW+j}, v{hW+8+j}")
    for j in range(4): a(f"v_cvt_pk_bf16_f32 v{hW+j}, v{hW+2*j}, v{hW+2*j+1}")
    a(f"ds_write_b64 v3, v[{hW}:{hW+1}]\nds_write_b64 v3, v[{hW+2}:{hW+3}] offset:512\ns_waitcnt lgkmcnt(0)")
    stamp(3)
    a("s_barrier")
    if P["W1L"]: mlp_first()

    a(f"v_and_b32 v3, 15, v0\nv_lshlrev_b32 v6, 3, v3\nv_add_u32 v6, {L_ML}, v6")
    a.label("L_H2")
    a("s_sleep 4\nds_read_b64 v[8:9], v6\ns_waitcnt lgkmcnt(0)\nv_max_u32 v10, v8, v9\nv_cmp_eq_u32 vcc, -1, v10")
    spin_tail("L_H2")
    a("v_mov_b32 v12, v8")
    dpp("v_max_f32", 12, "row_ror:4"); dpp("v_max_f32", 12, "row_ror:8")
    a("v_sub_f32 v13, v8, v12\nv_mul_f32 v13, 0x3fb8aa3b, v13\nv_exp_f32 v13, v13\nv_mul_f32 v13, v13, v9")
    dpp("v_add_f32", 13, "row_ror:4"); dpp("v_add_f32", 13, "row_ror:8")
    if LOC: a("s_getreg_b32 s67, hwreg(HW_REG_XCC_ID, 0, 4)\ns_lshl_b32 s67, s67, 4\nv_mov_b32 v14, s67\nv_mov_b32 v15, 0")
    else: a("v_mov_b32 v14, 0\nv_mov_b32 v15, 0")
    tag4(12, hT)
    a(f"s_lshl_b32 s32, s{sG}, {11+P['LM']}\ns_add_u32 s32, s32, {WS_ML}\ns_lshl_b32 s81, s{sS}, {6+P['LM']}\ns_add_u32 s81, s81, s32")
    a("v_lshrrev_b32 v1, 2, v0\nv_lshlrev_b32 v1, 7, v1\nv_and_b32 v2, 3, v0\nv_lshl_add_u32 v1, v2, 4, v1")
    if not P["NOML"]: a("s_mov_b64 exec, 15\nbuffer_store_dwordx4 v[12:15], v5, s[12:15], s81 offen sc1\ns_mov_b64 exec, -1")
    stamp(6)

    remap(P["CM"])
    for j in range(4): a(f"v_mov_b32 v{hW+j}, 0")
    a(f"s_cmp_eq_u32 s{sCG}, 7\ns_cbranch_scc1 L_NOH")
    srd(16, pB1, 3584)
    a(f"s_lshl_b32 s81, s{sCG}, 2\ns_lshr_b32 s82, s{sCS}, 3\ns_add_u32 s81, s81, s82\ns_and_b32 s82, s{sCS}, 4")
    a(f"s_lshl_b32 s29, s81, 11\ns_lshl_b32 s83, s82, 5\ns_add_u32 s29, s29, s83\ns_add_u32 s29, s29, {WS_H}")
    a("s_lshl_b32 s81, s81, 7\ns_lshl_b32 s82, s82, 1\ns_add_u32 s81, s81, s82\nbuffer_load_dwordx2 v[204:205], v4, s[16:19], s81 offen")
    a("v_lshrrev_b32 v3, 3, v0\nv_lshl_add_u32 v3, v3, 8, v4")
    gather("L_H5", hW, 1, 29, 3, vX, hT, P["QSLEEP"])
    for j in range(4): dpp("v_add_f32", hW + j, "row_ror:8")
    for sw in ("v_permlane16_swap_b32", "v_permlane32_swap_b32"):
        for j in range(4): a(f"v_mov_b32 v{hW+4+j}, v{hW+j}")
        for j in range(4): a(f"{sw} v{hW+j}, v{hW+4+j}")
        for j in range(4): a(f"v_add_f32 v{hW+j}, v{hW+j}, v{hW+4+j}")
    def rnd4(x, t):
        a(f"v_cvt_pk_bf16_f32 v{t}, v{x}, v{x+1}\nv_cvt_pk_bf16_f32 v{t+1}, v{x+2}, v{x+3}")
        unpack(x, x + 1, t); unpack(x + 2, x + 3, t + 1)
    rnd4(hW, hW + 8)
    unpack(hW + 4, hW + 5, 204); unpack(hW + 6, hW + 7, 205)
    for j in range(4): a(f"v_add_f32 v{hW+j}, v{hW+j}, v{hW+4+j}")
    rnd4(hW, hW + 8)
    for op in ("v_mul_f32 {t}, {x}, {x}", "v_mul_f32 {t}, {t}, {x}", "v_mul_f32 {t}, 0x3d372713, {t}", "v_add_f32 {t}, {x}, {t}",
               "v_mul_f32 {t}, 0xc0135761, {t}", "v_exp_f32 {t}, {t}", "v_add_f32 {t}, 1.0, {t}", "v_rcp_f32 {t}, {t}", "v_mul_f32 {x}, {x}, {t}",
               "v_cvt_pk_bf16_f32 {x}, {x}, {x}"):
        for j in range(4): a(op.format(x=f"v{hW+j}", t=f"v{hW+4+j}"))
    a.settle()
    a.label("L_NOH")
    a(f"v_lshrrev_b32 v3, 1, v0\nv_lshlrev_b32 v3, 4, v3\nv_and_b32 v6, 1, v0\nv_lshl_add_u32 v3, v6, 1, v3\nv_add_u32 v3, {L_H}, v3\ns_mov_b64 exec, 0xff")
    for j in range(4): a(f"ds_write_b16 v3, v{hW+j} offset:{4*j}")
    a("s_mov_b64 exec, -1")
    stamp(5)

    a("s_cmp_lt_u32 s2, 224\ns_cbranch_scc1 L_NOFIN")
    srd(4, pX, 1024); srd(8, pB2, 1024)
    final_index()
    a("v_and_b32 v3, 3, v0\nv_lshlrev_b32 v3, 4, v3\nv_lshl_add_u32 v3, v7, 1, v3")
    a("buffer_load_ushort v204, v3, s[4:7], s82 offen\nbuffer_load_ushort v206, v3, s[8:11], s82 offen")
    a(f"v_lshlrev_b32 v3, 2, v0\nv_add_u32 v3, {L_FIN}, v3\ns_waitcnt vmcnt(0)")
    a("v_lshlrev_b32 v206, 16, v206\nv_lshlrev_b32 v204, 16, v204\nv_add_f32 v204, v204, v206\nds_write_b32 v3, v204")
    a.settle()
    a.label("L_NOFIN")

    if P["WOT"]:
        srd(16, pWO, 4 << 20)
        a(f"s_lshl_b32 s81, s{sG}, 19\ns_lshr_b32 s82, s{sS}, 2\ns_lshl_b32 s82, s82, 16\ns_add_u32 s81, s81, s82")
        a(f"s_and_b32 s82, s{sS}, 3\ns_lshl_b32 s82, s82, 8\ns_add_u32 s81, s81, s82\nv_mov_b32 v6, 0\nbuffer_load_dword v207, v6, s[16:19], s81 offen")
    a(f"v_mov_b32 v6, {L_GO}")
    a.label("L_H4")
    a("s_sleep 4\nds_read_b32 v10, v6\ns_waitcnt lgkmcnt(0)\nv_cmp_eq_u32 vcc, -1, v10")
    spin_tail("L_H4")
    if not P["NOML"]: gather("L_H3", 12, 2, 32, 1 if P["LM"] else 5, vX, hT, P["QSLEEP"], 1024 << P["LM"])
    if LOC:
        a("v_xor_b32 v14, s67, v14\nv_xor_b32 v18, s67, v18\nv_or_b32 v14, v14, v18\nv_cmp_ne_u32 vcc, 0, v14")
        a.settle()
        a("s_cmp_eq_u64 vcc, 0\ns_cselect_b32 s67, -1, 0")
        if LOC > 1: a(f"s_mov_b32 s67, {-1 if LOC == 2 else 0}")
        a("v_mov_b32 v14, s67")
    a("v_max_f32 v10, v12, v16")
    dpp("v_max_f32", 10, "row_ror:4"); dpp("v_max_f32", 10, "row_ror:8")
    rows_allreduce("v_max_f32", 10, 11)
    a("v_sub_f32 v12, v12, v10\nv_sub_f32 v16, v16, v10\nv_sub_f32 v8, v8, v10")
    a("v_mul_f32 v12, 0x3fb8aa3b, v12\nv_mul_f32 v16, 0x3fb8aa3b, v16\nv_mul_f32 v8, 0x3fb8aa3b, v8")
    a("v_exp_f32 v12, v12\nv_exp_f32 v16, v16\nv_exp_f32 v8, v8")
    a("v_mul_f32 v12, v12, v13\nv_fmac_f32 v12, v16, v17")
    dpp("v_add_f32", 12, "row_ror:4"); dpp("v_add_f32", 12, "row_ror:8")
    rows_allreduce("v_add_f32", 12, 11)
    a("v_rcp_f32 v12, v12\nv_mul_f32 v8, v8, v12")
    a(f"v_and_b32 v6, 3, v0\nv_lshlrev_b32 v6, 4, v6\nv_and_b32 v9, 12, v0\nv_add3_u32 v6, v6, v9, 0\nv_add_u32 v6, {L_FAC}, v6")
    a("s_mov_b64 exec, 0xffff\nds_write_b32 v6, v8")
    if LOC: a(f"ds_write_b32 v6, v14 offset:{L_LOC - L_FAC}")
    a("s_waitcnt lgkmcnt(0)")
    stamp(7)
    a("s_branch L_EXIT")

    if CD:
        CP, LS, GL = P["CP"], P["CST"], P["CX"] == 5
        G6 = P["CX"] == 6
        a.label("L_CTRL")
        a(f"v_lshlrev_b32 v1, 4, v0\nv_add_u32 v1, {L_PR}, v1")
        for i in range(4): a(f"v_mov_b32 v{4+i}, 0")
        a("ds_write_b128 v1, v[4:7]\nds_write_b128 v1, v[4:7] offset:1024")
        a("s_waitcnt lgkmcnt(0)")
        srd(12, pWS, WS_BYTES)
        load_epoch()
        a(f"s_mul_i32 s81, s{sG}, {LS}\ns_add_u32 s81, s81, {WS_PR}\nv_lshl_add_u32 v2, v0, 2, s81\nv_mov_b32 v10, {4*R - 2*CP}")
        a(f"s_mov_b32 exec_lo, 0\nv_and_b32 v2, 7, v0\nv_mul_u32_u24 v2, {LS}, v2\nv_add_u32 v2, {WS_PR + 8*LS}, v2\nv_mov_b32 v10, 0\ns_mov_b32 exec_lo, -1")
        a(f"s_lshl_b64 s[16:17], 1, s{sS}\ns_lshl_b32 s21, 1, s{sG}\ns_andn2_b32 s22, {255 if GL else 0}, s21")
        a(f"s_lshl_b32 s81, s{sG}, 2\ns_xor_b32 s81, s81, s{sS}\ns_and_b32 s81, s81, {P['CM5']}\ns_cselect_b32 s21, 0, s21")
        a(f"s_lshl_b32 s81, s{sS}, 3\ns_add_u32 s81, s81, s{sG}\ns_mul_i32 s81, s81, {4*CP}\ns_lshr_b32 s81, s81, 8\ns_add_u32 s26, s81, {4*R}")
        if G6:
            a(f"v_add_u32 v11, {8*LS}, v2\ns_mov_b32 exec_lo, 0\nv_mov_b32 v11, v2\ns_mul_i32 s81, s{sG}, {LS}\ns_add_u32 s81, s81, {WS_PR + 128}\nv_mov_b32 v2, s81\ns_mov_b32 exec_lo, -1")
            a(f"s_lshl_b32 s21, 1, s{sG}\ns_andn2_b32 s21, 255, s21\ns_mov_b32 s22, 1")
            a(f"s_lshl_b32 s81, s{sG}, 2\ns_sub_u32 s23, s{sS}, s81\ns_and_b32 s23, s23, 31\ns_mul_i32 s23, s23, {P['CK']}")
        a(f"s_bitcmp0_b32 s{sG}, 0\ns_cselect_b32 s20, {P['CC'] + P['CB']}, {P['CC']}")
        a(f"s_waitcnt lgkmcnt(0)\ns_add_u32 s{sE}, s{sE}, 0x9b35e3c1\ns_lshl_b32 s{sE}, s{sE}, 10\ns_movk_i32 s18, 0x400\ns_not_b32 s19, s{sE}")
        a("s_barrier")
        a.label("L_C0")
        a(f"s_sleep {P['CSL']}\nds_read_b32 v3, v1\ns_sub_u32 s{sSPIN}, s{sSPIN}, 1\ns_cbranch_scc1 L_EXIT\ns_waitcnt lgkmcnt(0)")
        a("v_readlane_b32 s8, v3, 0\nv_readlane_b32 s9, v3, 16\nv_readlane_b32 s10, v3, 32\nv_readlane_b32 s11, v3, 48")
        a("s_add_u32 s8, s8, s9\ns_add_u32 s10, s10, s11\ns_add_u32 s8, s8, s10\ns_cmp_lt_u32 s8, s26\ns_cbranch_scc1 L_C0")
        a(f"s_add_u32 s26, s26, {4*CP}\ns_or_b32 s9, s8, s{sE}\nv_mov_b32 v9, s9\nv_mov_b32 v4, s19")
        a(f"s_mov_b32 exec_hi, s22\nbuffer_load_dword v4, v2, s[12:15], 0 offen {P['CLP']}")
        a(f"s_mov_b64 exec, s[16:17]\nbuffer_store_dword v9, v2, s[12:15], 0 offen {P['CSP']}\ns_mov_b64 exec, -1")
        a(f"v_lshlrev_b32 v5, 2, v3\nv_add_u32 v3, s20, v3\ns_waitcnt vmcnt(1)")
        a(f"v_xor_b32 v4, s{sE}, v4\nv_cmp_gt_u32 vcc, s18, v4\nv_cndmask_b32 v4, v10, v4, vcc")
        for r in (1, 2, 4, 8): dpp("v_add_u32", 4, f"row_ror:{r}")
        a("v_readlane_b32 s8, v4, 0\nv_readlane_b32 s9, v4, 16\nv_readlane_b32 s10, v4, 32")
        a(f"s_add_u32 s8, s8, s9\ns_lshr_b32 s8, s8, 5\ns_add_u32 s8, s8, {2*CP}")
        if GL:
            a(f"s_min_u32 s9, s8, 0x3ff\ns_or_b32 s9, s9, s{sE}\nv_mov_b32 v9, s9")
            a(f"s_mov_b32 exec_lo, 0\ns_mov_b32 exec_hi, s21\ns_cbranch_execz L_C1\nbuffer_store_dword v9, v2, s[12:15], 0 offen {P['CGP']}")
            a.label("L_C1")
            a("s_mov_b64 exec, -1\ns_bcnt1_i32_b32 s11, vcc_hi")
            a(f"s_sub_u32 s9, {P['CR']}, s8\ns_mul_i32 s9, s9, s11\ns_add_u32 s9, s9, s10\ns_ashr_i32 s9, s9, {P['CW']}\ns_add_u32 s8, s8, s9")
        if G6:
            a("s_sub_u32 s10, s10, 0x200\ns_cmp_eq_u32 vcc_hi, 0\ns_cselect_b32 s10, 0, s10")
            a("s_sub_u32 s23, s23, 1\ns_cbranch_scc0 L_C1")
            a(f"s_min_u32 s9, s8, 0x3ff\ns_or_b32 s9, s9, s{sE}\nv_mov_b32 v9, s9\nv_mov_b32 v4, s19")
            a(f"s_mov_b32 exec_lo, 0\ns_mov_b32 exec_hi, s21\nbuffer_load_dword v4, v11, s[12:15], 0 offen {P['CGL']}")
            a(f"s_mov_b32 exec_lo, -1\ns_mov_b32 exec_hi, 0\nbuffer_store_dword v9, v11, s[12:15], 0 offen {P['CGP']}\ns_mov_b64 exec, -1\ns_waitcnt vmcnt(1)")
            a(f"v_xor_b32 v4, s{sE}, v4\nv_cmp_gt_u32 vcc, s18, v4\nv_cndmask_b32 v4, v10, v4, vcc")
            for r in (1, 2, 4, 8): dpp("v_add_u32", 4, f"row_ror:{r}")
            a("v_readlane_b32 s10, v4, 32\ns_bcnt1_i32_b32 s11, vcc_hi")
            a(f"s_sub_u32 s9, {P['CR']}, s8\ns_mul_i32 s9, s9, s11\ns_add_u32 s9, s9, s10\ns_ashr_i32 s10, s9, {P['CW']}")
            a(f"s_add_u32 s9, s10, 0x200\ns_and_b32 s9, s9, 0x3ff\ns_or_b32 s9, s9, s{sE}\nv_mov_b32 v9, s9")
            a("s_mov_b32 exec_lo, 0\ns_mov_b32 exec_hi, 1\nbuffer_store_dword v9, v2, s[12:15], 0 offen\ns_mov_b64 exec, -1")
            a.label("L_C1")
            a("s_add_u32 s8, s8, s10")
        a(f"v_sub_u32 v5, s8, v5\nv_mul_i32_i24 v5, {P['CG']}, v5\nv_ashrrev_i32 v5, 2, v5\nv_add_u32 v4, v5, v3")
        a("v_mov_b32 v5, v4\nv_mov_b32 v6, v4\nv_mov_b32 v7, v4\nds_write_b128 v1, v[4:7] offset:1024")
        a(f"s_cmp_lt_u32 s26, {4*P['CE']}\ns_cbranch_scc1 L_C0\ns_waitcnt lgkmcnt(0)\ns_branch L_EXIT")

    a.raw(f""".section .rodata,"a"
.p2align 6
.amdhsa_kernel {NAME}_kernel
  .amdhsa_next_free_vgpr 256
  .amdhsa_next_free_sgpr 102
  .amdhsa_accum_offset 256
  .amdhsa_group_segment_fixed_size 0
  .amdhsa_kernarg_size 104
  .amdhsa_user_sgpr_count 2
  .amdhsa_user_sgpr_kernarg_segment_ptr 1
  .amdhsa_system_sgpr_workgroup_id_x 1
  .amdhsa_float_denorm_mode_32 3
.end_amdhsa_kernel""")
    return a.text(), LDS, forced


if __name__ == "__main__":
    kw = {}
    out = f"cdna_kernels/{NAME}.s"
    for arg in sys.argv[1:]:
        k, v = arg.split("=")
        if k == "out": out = v
        else: kw[k] = int(v) if v.lstrip("-").isdigit() else v
    text, lds, forced = gen(**kw)
    open(out, "w").write(text)
    print("wrote", out, len(text), "bytes, lds", lds, "forced", forced)
```

```python
import re, sys
from asm import Asm

NAME = "parallel_sum__gqa_block_cached__dense_activation_gelu__decode"

DEF = dict(D=5, R=36, NP=0, NV=32, ROT=16, NT="nt", DBG=0, BUD=200, WNT="nt", NORND=0, MLPOS=48, QSLEEP=8, MAP="x", PWG=-1, PST=0, S1=0, S2=0, DE=0, DEN=0, WOP=0, WOT=0, NOWO=0, NOTAIL=0, CM=10, QM=1, FM=2, AD=0, A0=150, A1=143, AB=36, CD=7, CP=16, CN=4, CG=3, CC=5, CE=240, CSL=2, CST=4224, CX=4, L1=1, L2=1, LM=1, LF=0, DP="", CSP="", CLP="nt", CB=3, CM5=31, CGP="sc1", CR=56, CW=3, CK=1, CGL="sc1", NOF=0, NOML=0, NOH=0, WOL=5, P1S="sc1", P1L="sc1", P2S="sc1", P2L="sc1", DI=0, DIN=0, W1L=0, DW=4, G1=0, G2=2, Z1=0, Z2=0, IW=0, IX=56, IXS=-1, SH=0, LOC=1, LO2=1, TW=240, X2=0, PERM=0, TR=1, PF=0, TNT="nt", PNT="", PFL=0, PLS="")

WS_O1, WS_O2, WS_F, WS_ML, WS_E, WS_Q, WS_H, WS_DBG = 0, 512 << 10, 640 << 10, 1088 << 10, 1120 << 10, 1280 << 10, 1344 << 10, 2 << 20
WS_PR = 1536 << 10
WS_BYTES = 4 << 20
FSTRIDE = 224 * 64
SLOT = 1040
SPIN = 400000


def gen(**kw):
    P = dict(DEF); P.update(kw)
    D, R, NP, NV, ROT, NT, DBG, BUD, WNT = (P[k] for k in ("D", "R", "NP", "NV", "ROT", "NT", "DBG", "BUD", "WNT"))
    RING = R * SLOT
    LOC = P["LOC"]
    if LOC: P["CM"], P["FM"] = 0, 4
    L_Q = 4 * RING
    L_ML, L_GO, L_FAC, L_FIN = L_Q + 1024, L_Q + 1024 + 128, L_Q + 1024 + 192, L_Q + 1024 + 256
    L_H = L_FIN + 512
    L_LOC = L_H + 64
    L_PR = L_LOC + (64 if LOC else 0)
    CD = P["CD"]
    LDS = max(L_PR + (2048 if CD else 0), 84 << 10)
    a = Asm()
    hdr = open(f"cdna_kernels/{NAME}.s.ref").read().split("; Override")[0]
    a.raw(hdr.rstrip())
    a.raw(f"; @launch grid=(256,1,1) block=({384 if CD else 320},1,1) lds={LDS}")
    a.raw('.amdgcn_target "amdgcn-amd-amdhsa--gfx950"')
    a.raw("""; Workgroup (g = id % 8, s = id / 8) streams 2048 keys of KV head g: waves 0-3 stream K then V, wave 4 computes
; The L_IW links are taken only by wave 4 with EXEC = 0: they pull the final section into the instruction cache.""")
    a.raw(f".text\n.globl {NAME}_kernel\n.p2align 8\n.type {NAME}_kernel,@function\n{NAME}_kernel:")

    pX, pK, pV, pWQ, pWO, pW1, pB1, pW2, pB2, pOUT, pDBG, pWS = 36, 38, 40, 42, 44, 48, 50, 52, 54, 56, 58, 60
    sG, sS, sKP, sVP, sMSK, sLB, sLO, sHI, sSPIN = 62, 63, 64, 65, 66, 68, 69, 70, 80
    sCLS, sE = 72, 28
    sCG, sCS = 33, 34

    def remap(mode):
        if mode < 8: a(f"s_add_u32 s{sCG}, s{sG}, {mode}\ns_and_b32 s{sCG}, s{sCG}, 7\ns_mov_b32 s{sCS}, s{sS}")
        elif mode == 8: a(f"s_lshr_b32 s{sCG}, s2, 5\ns_and_b32 s{sCS}, s2, 31")
        elif mode == 9: a(f"s_and_b32 s{sCG}, s{sS}, 3\ns_add_u32 s{sCG}, s{sCG}, s{sG}\ns_add_u32 s{sCG}, s{sCG}, 1\ns_and_b32 s{sCG}, s{sCG}, 7\ns_mov_b32 s{sCS}, s{sS}")

        elif mode == 10:
            a(f"s_lshr_b32 s{sCG}, s{sS}, 3\ns_lshl_b32 s{sCG}, s{sCG}, 1\ns_andn2_b32 s{sCS}, 1, s{sG}\ns_add_u32 s{sCG}, s{sCG}, s{sCS}")
            a(f"s_and_b32 s{sCS}, s{sS}, 7\ns_lshl_b32 s{sCS}, s{sCS}, 3\ns_add_u32 s{sCS}, s{sCS}, s{sG}\ns_lshr_b32 s{sCS}, s{sCS}, 1")

    sF = 35
    def final_index():
        if P["FM"] == 0: a(f"s_and_b32 s{sF}, s2, 31")
        else:
            a(f"s_add_u32 s{sF}, s2, {2*P['FM']}\ns_and_b32 s{sF}, s{sF}, 7\ns_lshl_b32 s{sF}, s{sF}, 2\ns_bfe_u32 s82, s2, 0x20003\ns_add_u32 s{sF}, s{sF}, s82")
        a(f"s_lshr_b32 s82, s{sF}, 1\ns_lshl_b32 s82, s82, 6\ns_and_b32 s83, s{sF}, 1\ns_lshl_b32 s83, s83, 3\ns_add_u32 s82, s82, s83")

    def load_epoch():
        a(f"s_add_u32 s30, s{pWS}, {WS_E}\ns_addc_u32 s31, s{pWS+1}, 0\ns_load_dword s{sE}, s[30:31], 0")

    def make_tags(vt):
        a(f"s_add_u32 s{sE}, s{sE}, 0x9b35e3c1\nv_and_b32 v{vt+3}, 1, v0\nv_lshlrev_b32 v{vt+3}, 4, v{vt+3}\nv_lshrrev_b32 v{vt+3}, v{vt+3}, s{sE}")
        for i in range(4): a(f"v_bfe_u32 v{vt+i}, v{vt+3}, {4*i}, 4")

    def tag4(x, vt):
        for i in range(4): a(f"v_and_or_b32 v{x+i}, v{x+i}, -16, v{vt+i}")

    def untag(t, x, n, vt):
        for i in range(n): a(f"v_xor_b32 v{x+i}, v{vt + i % 4}, v{x+i}")
        a(f"v_or3_b32 v{t}, v{x}, v{x+1}, v{x+2}")
        for i in range(3, n - 1, 2): a(f"v_or3_b32 v{t}, v{t}, v{x+i}, v{x+i+1}")
        a(f"v_or_b32 v{t}, v{t}, v{x+n-1}\nv_and_b32 v{t}, 15, v{t}\nv_cmp_ne_u32 vcc, 0, v{t}\ns_wqm_b64 exec, vcc")

    def gather(label, dst, n, sbase, vaddr, t, vt, sleep=0, stride=1024, pol="sc1"):
        if sleep:
            a(f"s_branch {label}A")
            a.label(label)
            a(f"s_sleep {sleep}")
            a.label(label + "A")
        else:
            a.label(label)
        per = max(1, 4096 // stride)
        for i in range(n):
            if i % per == 0 and i: a(f"s_add_u32 s81, s{sbase}, {stride*i}")
            a(f"buffer_load_dwordx4 v[{dst+4*i}:{dst+4*i+3}], v{vaddr}, s[12:15], s{81 if i >= per else sbase} offen offset:{stride*(i % per)} {pol}")
        a("s_waitcnt vmcnt(0)")
        untag(t, dst, 4 * n, vt)
        spin_tail(label)
        a("s_mov_b64 exec, -1")

    pads = [0]
    def pad(skip=False):
        if not P["IW"]: return
        k = pads[0]; pads[0] += 1
        if skip: a(f"s_branch L_IS{k}")
        a.label(f"L_IW{k}")
        a(f"s_branch L_IW{k+1}")
        if skip: a.label(f"L_IS{k}")

    def pipe_poll(label, issue, n, sets, x, t, vt, gap, first=0):
        for k in range(first, len(sets)):
            if k and gap: a(f"s_sleep {gap}")
            issue(sets[k])
        a("s_mov_b64 s[24:25], -1")
        if P["IW"] > 1: pad(True)
        def adds(r):
            if n == 4:
                for i in range(0, 8, 2): a(f"v_pk_add_f32 v[{r+i}:{r+i+1}], v[{r+i}:{r+i+1}], v[{r+8+i}:{r+9+i}]")
            for i in (0, 2): a(f"v_pk_add_f32 v[{x+i}:{x+i+1}], v[{r+i}:{r+i+1}], v[{r+4+i}:{r+5+i}]")
        a.label(label)
        for k, r in enumerate(sets):
            a(f"s_waitcnt vmcnt({n*(len(sets)-1)})")
            untag(t, r, 4 * n, vt)
            a(f"s_cbranch_vccz {label}D{k}")
            issue(r)
            a("s_andn2_b64 exec, s[24:25], exec\ns_andn2_b64 s[24:25], s[24:25], exec")
            adds(r)
            a("s_mov_b64 exec, s[24:25]")
        a(f"s_sub_u32 s{sSPIN}, s{sSPIN}, 1\ns_cbranch_scc0 {label}\ns_branch L_EXIT")
        pad()
        for k, r in enumerate(sets):
            a.label(f"{label}D{k}")
            a("s_mov_b64 exec, s[24:25]")
            adds(r)
            if k < len(sets) - 1:
                a(f"s_branch {label}E"); pad()
        a.label(label + "E")
        a("s_mov_b64 exec, -1")

    def srd(d, p, nbytes):
        a(f"s_mov_b32 s{d}, s{p}\ns_mov_b32 s{d+1}, s{p+1}\ns_mov_b32 s{d+2}, {nbytes}\ns_mov_b32 s{d+3}, 0x20000")

    def stamp(i):
        if DBG: a(f"s_memrealtime s[{84+2*i}:{85+2*i}]")

    def dump_stamps():
        if not DBG: return
        if P["PWG"] >= 0:
            a(f"s_waitcnt lgkmcnt(0)\ns_cmp_lg_u32 s2, {P['PWG']}\ns_cbranch_scc1 L_PROBE_END\ns_cmp_lg_u32 s3, 1\ns_cbranch_scc1 L_PROBE_END")
            a(f"s_add_u32 s81, s{84+2*P['PST']}, 10000")
            a.label("L_PROBE")
            a("s_memrealtime s[82:83]\ns_waitcnt lgkmcnt(0)\ns_sub_u32 s82, s82, s81\ns_cmp_lt_i32 s82, 0\ns_cbranch_scc1 L_PROBE")
            a.label("L_PROBE_END")
            return
        a("s_mov_b64 exec, -1\ns_waitcnt lgkmcnt(0)")
        a(f"s_lshl_b32 s81, s2, 3\ns_add_u32 s81, s81, s3\ns_lshl_b32 s81, s81, 6\ns_add_u32 s81, s81, {WS_DBG}")
        a("s_getreg_b32 s82, hwreg(HW_REG_XCC_ID)\nv_mov_b32 v1, 0\ns_mov_b64 exec, 1")
        for i in range(9):
            a(f"v_mov_b32 v2, s{84+2*i}\nbuffer_store_dword v2, v1, s[12:15], s81 offen offset:{4*i}")
        a("v_mov_b32 v2, s82\nbuffer_store_dword v2, v1, s[12:15], s81 offen offset:60\ns_waitcnt vmcnt(0)")

    def unpack(lo, hi, src):
        a(f"v_lshlrev_b32 v{lo}, 16, v{src}\nv_and_b32 v{hi}, 0xffff0000, v{src}")

    def rnd1(x):
        a(f"v_cvt_pk_bf16_f32 v{x}, v{x}, v{x}\nv_and_b32 v{x}, 0xffff0000, v{x}")

    def dpp(op, x, ctl):
        a(f"{op}_dpp v{x}, v{x}, v{x} {ctl} row_mask:0xf bank_mask:0xf")

    def rows_allreduce(op, x, t):
        for sw in ("v_permlane16_swap_b32", "v_permlane32_swap_b32"):
            a(f"v_mov_b32 v{t}, v{x}\n{sw} v{t}, v{x}\n{op} v{x}, v{t}, v{x}")

    def quad_scatter_sum(x):
        a(f"v_permlane32_swap_b32 v{x}, v{x+2}\nv_permlane32_swap_b32 v{x+1}, v{x+3}")
        a(f"v_add_f32 v{x}, v{x}, v{x+2}\nv_add_f32 v{x+1}, v{x+1}, v{x+3}")
        a(f"v_permlane16_swap_b32 v{x}, v{x+1}\nv_add_f32 v{x}, v{x}, v{x+1}")
        dpp("v_add_f32", x, "row_ror:4"); dpp("v_add_f32", x, "row_ror:8")

    def umax_tree(t, rs):
        rs = list(rs)
        a(f"v_max3_u32 v{t}, v{rs[0]}, v{rs[1]}, v{rs[2 % len(rs)]}")
        rs = rs[3:]
        while rs:
            a(f"v_max3_u32 v{t}, v{t}, v{rs[0]}, v{rs[1 % len(rs)]}"); rs = rs[2:]

    def spin_tail(label):
        a(f"s_sub_u32 s{sSPIN}, s{sSPIN}, 1\ns_cbranch_scc1 L_EXIT\ns_cbranch_vccnz {label}")

    stamp(0)
    a("s_load_dwordx16 s[36:51], s[0:1], 0\ns_load_dwordx8 s[52:59], s[0:1], 64\ns_load_dwordx2 s[60:61], s[0:1], 96")
    a("s_cmp_lt_u32 s2, 0x100\ns_cbranch_scc1 L_LIVE\ns_waitcnt lgkmcnt(0)\ns_endpgm")
    for _ in range(P["SH"]): a("s_endpgm")
    a.label("L_LIVE")
    if P["PERM"] == 1: a("s_and_b32 s3, s2, 1\ns_lshl_b32 s3, s3, 7\ns_lshr_b32 s2, s2, 1\ns_or_b32 s2, s2, s3")
    if P["PERM"] > 1: a(f"s_xor_b32 s3, s2, 1\ns_lshr_b32 s4, s2, 1\ns_cmp_eq_u32 s4, {0 if P['PERM'] == 2 else 112}\ns_cselect_b32 s2, s3, s2")
    a("v_lshrrev_b32 v1, 6, v0\nv_and_b32 v0, 63, v0")
    if P["MAP"] == "x": a(f"s_and_b32 s{sG}, s2, 7\ns_lshr_b32 s{sS}, s2, 3")
    else: a(f"s_and_b32 s{sS}, s2, 31\ns_lshr_b32 s{sG}, s2, 5")
    a("v_readfirstlane_b32 s3, v1")
    a(f"s_mov_b32 s{sSPIN}, {SPIN}\ns_mov_b32 s{sLO}, 0x05040100\ns_mov_b32 s{sHI}, 0x07060302")
    a("s_cmp_lt_u32 s3, 4\ns_cbranch_scc1 L_STREAM")
    if CD: a("s_cmp_eq_u32 s3, 5\ns_cbranch_scc1 L_CTRL")

    hXA, hXQ, hXF, hW, hW1, hW2, hT, hA, hU = 8, 12, 20, 32, 96, 128, 24, 160, 168
    a("v_lshlrev_b32 v5, 4, v0\nv_lshrrev_b32 v1, 3, v0\nv_lshlrev_b32 v2, 5, v1\nv_and_b32 v4, 7, v0\nv_lshlrev_b32 v4, 4, v4\nv_lshl_add_u32 v3, v1, 17, v4")
    remap(P["QM"])
    a(f"s_lshr_b32 s83, s{sCS}, 3\ns_lshl_b32 s81, s83, 20\ns_lshl_b32 s82, s{sCG}, 10\ns_add_u32 s81, s81, s82\ns_and_b32 s82, s{sCS}, 7\ns_lshl_b32 s82, s82, 7\ns_add_u32 s81, s81, s82\ns_lshl_b32 s82, s83, 8")
    a("s_waitcnt lgkmcnt(0)")
    srd(4, pX, 1024); srd(16, pWQ, 4 << 20)
    a(f"buffer_load_dwordx4 v[{hXA}:{hXA+3}], v5, s[4:7], 0 offen")
    a(f"buffer_load_dwordx4 v[{hXQ}:{hXQ+3}], v2, s[4:7], s82 offen\nbuffer_load_dwordx4 v[{hXQ+4}:{hXQ+7}], v2, s[4:7], s82 offen offset:16")
    a(f"s_and_b32 s82, s2, 7\ns_lshl_b32 s82, s82, 7\nv_lshlrev_b32 v2, 4, v1\nbuffer_load_dwordx4 v[{hXF}:{hXF+3}], v2, s[4:7], s82 offen")
    for i in range(16):
        a(f"buffer_load_dwordx4 v[{hW+4*i}:{hW+4*i+3}], v3, s[16:19], s81 offen {WNT}")
        if i < 15: a("s_addk_i32 s81, 0x2000")
    a("s_branch L_HELP")

    vKO, vVO, vRD, vMK, vMAX, vL, vS, vA, vQ, vACC, vD, vT0, vT, vV = 1, 2, 3, 8, 12, 13, 16, 48, 64, 64, 80, 84, 88, 120
    assert vV + 4 * NV <= 256
    a.label("L_STREAM")
    a("s_setprio 2")
    a(f"s_lshl_b32 s81, s{sG}, 24\ns_lshl_b32 s82, s{sS}, 19\ns_add_u32 s81, s81, s82\ns_lshl_b32 s82, s3, 10\ns_add_u32 s81, s81, s82")
    a(f"v_lshlrev_b32 v{vVO}, 4, v0\nv_lshrrev_b32 v7, 4, v0\nv_lshlrev_b32 v14, 6, v7\nv_xor_b32 v{vKO}, v14, v{vVO}")
    a(f"v_add_u32 v{vVO}, s81, v{vVO}\nv_add_u32 v{vKO}, s81, v{vKO}")
    a(f"s_mov_b32 s{sMSK}, 0x7ffff\ns_mul_i32 s{sKP}, s2, {ROT*1024}\ns_and_b32 s{sKP}, s{sKP}, s{sMSK}\ns_mov_b32 s{sVP}, s{sKP}")
    a(f"s_mul_i32 s{sLB}, s3, {RING}")
    a("s_waitcnt lgkmcnt(0)")
    srd(8, pV, 128 << 20); srd(4, pK, 128 << 20)

    seq = [("V", i) for i in range(NP)] + [("K", i) for i in range(128)] + [("V", i) for i in range(NP, 128)]
    WOP = P["WOP"]
    if WOP:
        assert vV + 4 * NV <= 240
        seq = seq[:len(seq) - WOP] + [("W", i) for i in range(4)] + seq[len(seq) - WOP:]
    pos = {x: n for n, x in enumerate(seq)}
    st = dict(rd=0, mf=0, sel=0, rnd=0, sm=0, perm=0, ap=0, pv=0, q=False, landed=-1, setup=0)
    vslot = lambda vi: vV + 4 * (vi % NV)

    def setup_pieces():
        def p0():
            a("v_and_b32 v14, 3, v0\nv_bfe_u32 v15, v0, 2, 2")
            a(f"v_mul_u32_u24 v{vRD}, {SLOT}, v14\nv_lshl_add_u32 v{vRD}, v15, 8, v{vRD}\nv_lshl_add_u32 v{vRD}, v7, 4, v{vRD}\nv_add_u32 v{vRD}, s{sLB}, v{vRD}")
            for ks in (3, 2, 1, 0):
                a(f"v_xor_b32 v{vT0}, {ks}, v15\nv_lshl_add_u32 v{vRD+ks}, v{vT0}, 6, v{vRD}")
        def p1():
            for i in range(4):
                m = 0x11111111 << i
                a(f"s_mov_b32 s{sCLS+2*i}, {hex(m)}\ns_mov_b32 s{sCLS+2*i+1}, {hex(m)}")
                a(f"v_cndmask_b32 v{vMK+i}, 0, -1, s[{sCLS+2*i}:{sCLS+2*i+1}]")
            a(f"v_mov_b32 v{vMAX}, 0xff800000\nv_mov_b32 v{vL}, 0")
        def p2():
            srd(12, pWS, WS_BYTES); srd(16, pWO, 4 << 20); srd(20, pOUT, 1024)
            load_epoch()
            a(f"v_lshlrev_b32 v15, 8, v15\nv_lshl_add_u32 v15, v7, 4, v15\nv_add_u32 v15, {L_Q}, v15")
            if CD: a(f"s_lshl_b32 s81, s3, 8\ns_add_u32 s81, s81, {L_PR}\nv_lshl_add_u32 v248, v0, 2, s81")
        return [p0, p1, p2]
    setup = setup_pieces()

    def tile_dst(T):
        b = T // 2
        return (b % 4), vS + 8 * (b // 4) + 4 * (T % 2)

    def k_sel(T):
        t, dst = tile_dst(T)
        if t == 0: return 0
        for i in range(4):
            a(f"v_cndmask_b32 v{dst+i}, v{dst+i}, v{vD+i}, s[{sCLS+2*t}:{sCLS+2*t+1}]")
        return 16

    def k_mfma(T):
        t, dst = tile_dst(T)
        d = dst if t == 0 else vD
        a("s_waitcnt lgkmcnt(0)")
        for ks in range(4):
            c = "0" if ks == 0 else f"v[{d}:{d+3}]"
            a(f"v_mfma_f32_16x16x32_bf16 v[{d}:{d+3}], v[{vA+4*ks}:{vA+4*ks+3}], v[{vQ+4*ks}:{vQ+4*ks+3}], {c}")
        return 64

    def k_read(T):
        off = ((4 * T) % R) * SLOT
        for ks in range(4):
            a(f"ds_read_b128 v[{vA+4*ks}:{vA+4*ks+3}], v{vRD+ks} offset:{off}")
        return 24

    def k_round(j):
        x = vS + 4 * j
        if P["NORND"]:
            for i in range(4): a(f"v_mul_f32 v{x+i}, 0x3db504f3, v{x+i}")
            a(f"v_max3_f32 v{vMAX}, v{vMAX}, v{x}, v{x+1}\nv_max3_f32 v{vMAX}, v{vMAX}, v{x+2}, v{x+3}")
            return 30
        a(f"v_cvt_pk_bf16_f32 v{vT0}, v{x}, v{x+1}\nv_cvt_pk_bf16_f32 v{vT0+1}, v{x+2}, v{x+3}")
        unpack(x, x + 1, vT0); unpack(x + 2, x + 3, vT0 + 1)
        for i in range(4): a(f"v_mul_f32 v{x+i}, 0x3db504f3, v{x+i}")
        a(f"v_cvt_pk_bf16_f32 v{vT0}, v{x}, v{x+1}\nv_cvt_pk_bf16_f32 v{vT0+1}, v{x+2}, v{x+3}")
        unpack(x, x + 1, vT0); unpack(x + 2, x + 3, vT0 + 1)
        a(f"v_max3_f32 v{vMAX}, v{vMAX}, v{x}, v{x+1}\nv_max3_f32 v{vMAX}, v{vMAX}, v{x+2}, v{x+3}")
        return 80

    def softmax(j):
        if j == 0:
            dpp("v_max_f32", vMAX, "quad_perm:[1,0,3,2]"); dpp("v_max_f32", vMAX, "quad_perm:[2,3,0,1]")
            rows_allreduce("v_max_f32", vMAX, vT0)
            for i in range(8): a(f"v_mov_b32 v{vACC+i}, 0")
            stamp(2)
            return 100
        if j <= 8:
            x = vS + 4 * (j - 1)
            for i in range(4): a(f"v_sub_f32 v{x+i}, v{x+i}, v{vMAX}")
            for i in range(4): a(f"v_mul_f32 v{x+i}, 0x3fb8aa3b, v{x+i}")
            for i in range(4): a(f"v_exp_f32 v{x+i}, v{x+i}")
            a(f"v_add_f32 v{vT0}, v{x}, v{x+1}\nv_add_f32 v{vT0+1}, v{x+2}, v{x+3}")
            dst = vS + 8 * ((j - 1) // 2) + 2 * ((j - 1) % 2)
            a(f"v_cvt_pk_bf16_f32 v{dst}, v{x}, v{x+1}\nv_cvt_pk_bf16_f32 v{dst+1}, v{x+2}, v{x+3}")
            a(f"v_add_f32 v{vL}, v{vL}, v{vT0}\nv_add_f32 v{vL}, v{vL}, v{vT0+1}")
            return 100
        dpp("v_add_f32", vL, "quad_perm:[1,0,3,2]"); dpp("v_add_f32", vL, "quad_perm:[2,3,0,1]")
        rows_allreduce("v_add_f32", vL, vT0)
        a(f"v_min_u32 v{vMAX}, -2, v{vMAX}\nv_min_u32 v{vL}, -2, v{vL}")
        a(f"s_lshl_b32 s81, s3, 5\ns_add_u32 s81, s81, {L_ML}\nv_lshl_add_u32 v{vT0}, v0, 1, s81")
        a(f"s_mov_b64 exec, 0x1111\nds_write_b64 v{vT0}, v[{vMAX}:{vMAX+1}]\ns_mov_b64 exec, -1")
        return 100

    def v_perm(pr):
        ra, rb, p = vslot(2 * pr), vslot(2 * pr + 1), pr % 4
        for q in range(4):
            a(f"v_perm_b32 v{vT+8*q+p}, v{rb+q}, v{ra+q}, s{sLO}\nv_perm_b32 v{vT+8*q+4+p}, v{rb+q}, v{ra+q}, s{sHI}")
        return 32

    def a_prep(b):
        t, src = b % 4, vS + 8 * (b // 4)
        for i in range(4):
            for p in range(4):
                a(f"v_and_b32_dpp v{vA+4*i+p}, v{src+p}, v{vMK+i} quad_perm:[{t},{t},{t},{t}] row_mask:0xf bank_mask:0xf")
        return 64

    def pv_mfma(h):
        jj = h % 2
        for i in range(4):
            j = 4 * jj + i
            d = f"v[{vACC+4*jj}:{vACC+4*jj+3}]"
            a(f"v_mfma_f32_16x16x32_bf16 {d}, v[{vA+4*i}:{vA+4*i+3}], v[{vT+4*j}:{vT+4*j+3}], {d}")
        return 64

    def work(budget):
        spent = 0
        landed = lambda x: pos[x] <= st["landed"]
        if st["setup"] < len(setup):
            setup[st["setup"]](); st["setup"] += 1
            return 60
        if st["sel"] < st["mf"]:
            spent += k_sel(st["sel"]) + 1; st["sel"] += 1
        if st["q"] and st["mf"] < st["rd"]:
            spent += k_mfma(st["mf"]); st["mf"] += 1
        if st["rd"] < 32 and st["rd"] == st["mf"] and landed(("K", 4 * st["rd"] + 3)):
            spent += k_read(st["rd"]); st["rd"] += 1
        while spent < budget:
            if st["rnd"] < 8 and st["sel"] >= 8 * (st["rnd"] // 2) + 7 + st["rnd"] % 2:
                spent += k_round(st["rnd"]); st["rnd"] += 1
            elif st["pv"] < 32 and st["ap"] > st["pv"] // 2 and st["perm"] >= 4 * (st["pv"] // 2 + 1):
                spent += pv_mfma(st["pv"]); st["pv"] += 1
            elif st["ap"] < 16 and st["pv"] == 2 * st["ap"] and st["sm"] >= 3 + 2 * (st["ap"] // 4):
                spent += a_prep(st["ap"]); st["ap"] += 1
            elif st["perm"] < 64 and st["pv"] >= 2 * (st["perm"] // 4) and landed(("V", 2 * st["perm"] + 1)):
                spent += v_perm(st["perm"]); st["perm"] += 1
            elif st["rnd"] == 8 and st["sm"] < 10:
                spent += softmax(st["sm"]); st["sm"] += 1
            else:
                break
        return spent

    forced = 0
    for n, (kind, i) in enumerate(seq):
        if kind == "W":
            if n - D > st["landed"]:
                a(f"s_waitcnt vmcnt({D-1})"); st["landed"] = n - D
            a(f"s_mov_b32 s81, {4096*i}\nbuffer_load_dwordx4 v[{240+4*i}:{243+4*i}], v{vKO}, s[16:19], s81 offen {WNT}")
            work(BUD)
            continue
        free = (lambda: i < R or (i - R) // 4 < st["mf"]) if kind == "K" else (lambda: i < NV or (i - NV) // 2 < st["perm"])
        while not free():
            assert work(1) > 0, (n, kind, i, st)
            forced += 1
        sp = sKP if kind == "K" else sVP
        if kind == "K":
            a(f"s_mov_b32 m0, s{sLB}" if i % R == 0 else f"s_addk_i32 m0, {SLOT}")
        Dn = P["DE"] if n >= len(seq) - P["DEN"] else D
        if n < P["DIN"]: Dn = P["DI"]
        if P["DP"]: Dn = int(str(P["DP"])[n % len(str(P["DP"]))])
        if CD and n >= R:
            if n % 4 == 0: a(f"v_mov_b32 v249, {n}\nds_write_b32 v248, v249\nds_read_b32 v250, v248 offset:1024")
            if n % 4 == 1: a("s_waitcnt lgkmcnt(0)\nv_cmp_lt_i32 vcc, v249, v250")
            if n > R + 1:
                a(f"s_cbranch_vccnz L_F{n}\ns_waitcnt vmcnt({D-1})")
                a.label(f"L_F{n}")
                Dn = CD
        if P["AD"] and n >= P["AB"]:
            if n % 4 == 0: a("s_memrealtime s[26:27]")
            if n % 4 == 1: a(f"s_waitcnt lgkmcnt(0)\ns_sub_u32 s26, s26, s84\ns_cmp_gt_u32 s26, {P['A0'] + P['A1'] * n // 10}\ns_cselect_b64 vcc, -1, 0")
            if n > P["AB"] + 1:
                a(f"s_cbranch_vccnz L_F{n}\ns_waitcnt vmcnt({D-1})")
                a.label(f"L_F{n}")
                Dn = P["AD"]
        if n - Dn > st["landed"]:
            a(f"s_waitcnt vmcnt({Dn-1})"); st["landed"] = n - Dn
        if kind == "K":
            a(f"buffer_load_dwordx4 v{vKO}, s[4:7], s{sp} offen {NT} lds")
        else:
            r = vslot(i)
            a(f"buffer_load_dwordx4 v[{r}:{r+3}], v{vVO}, s[8:11], s{sp} offen {NT}")
        a(f"s_addk_i32 s{sp}, 0x1000\ns_and_b32 s{sp}, s{sp}, s{sMSK}")
        if (kind, i) == ("K", R - 1):
            assert st["setup"] == len(setup)
            stamp(7)
            a("s_barrier")
            stamp(1)
            for ks in range(4):
                a(f"ds_read_b128 v[{vQ+4*ks}:{vQ+4*ks+3}], v15 offset:{64*ks}")
            st["q"] = True
        if n == len(seq) - P["MLPOS"]:
            a(f"v_mov_b32 v14, {L_GO}\ns_mov_b64 exec, 1\nds_write_b32 v14, v14\ns_mov_b64 exec, -1")
        if n == len(seq) - max(12, WOP + 6):
            assert st["sm"] == 10
            make_tags(vD)
            remap(P["CM"])
            a(f"s_lshl_b32 s81, s{sCG}, 19\ns_lshr_b32 s82, s{sCS}, 2\ns_lshl_b32 s82, s82, 16\ns_add_u32 s81, s81, s82")
            a(f"s_lshl_b32 s82, s3, 14\ns_add_u32 s81, s81, s82\ns_and_b32 s82, s{sCS}, 3\ns_lshl_b32 s82, s82, 8\ns_add_u32 s81, s81, s82")
            a(f"v_and_b32 v14, 15, v0\nv_lshlrev_b32 v14, 4, v14\nv_lshl_add_u32 v14, v7, 10, v14\nv_add_u32 v{vKO}, s81, v14")
            if P["PF"]:
                a(f"s_xor_b32 s81, s81, {(P['PF'] >> 2) << 16}\nv_and_b32 v254, 1, v0\nv_lshlrev_b32 v254, 7, v254\nv_lshrrev_b32 v15, 1, v0")
                a("v_lshl_add_u32 v253, v15, 10, v254\nv_add_u32 v253, s81, v253\nv_and_b32 v15, 3, v15\nv_lshl_add_u32 v254, v15, 10, v254")
                a("v_lshrrev_b32 v15, 3, v0\nv_lshl_add_u32 v254, v15, 13, v254")
            a(f"s_lshl_b32 s81, s{sCG}, 18\ns_lshr_b32 s83, s{sCS}, 3\ns_lshl_b32 s83, s83, 16\ns_add_u32 s81, s81, s83\ns_add_u32 s81, s81, s82")
            a(f"s_and_b32 s83, s{sCS}, 4\ns_lshl_b32 s83, s83, 10\ns_add_u32 s81, s81, s83\ns_lshl_b32 s83, s3, 14\ns_add_u32 s81, s81, s83\nv_add_u32 v251, s81, v14")
            if P["PF"]: a(f"s_xor_b32 s81, s81, {(P['PF'] >> 3) << 16}\nv_add_u32 v254, s81, v254")
            srd(4, pW2, 1792 * 1024)
            a(f"s_lshl_b32 s81, s3, 4\ns_add_u32 s81, s81, {L_H}\nv_lshl_add_u32 v252, v7, 2, s81")
            a(f"v_lshlrev_b32 v6, 4, v0\nv_add_u32 v3, s{sLB}, v6")
            a("v_and_b32 v14, 1, v0\nv_lshlrev_b32 v14, 10, v14\nv_lshrrev_b32 v15, 1, v0\nv_lshl_add_u32 v4, v15, 4, v14\ns_lshl_b32 s81, s3, 8\nv_add_u32 v4, s81, v4")
            if P["L1"]:
                a(f"s_lshl_b32 s81, s{sG}, 16\ns_lshl_b32 s82, s3, 14\ns_add_u32 s82, s82, s81\ns_lshl_b32 s83, s{sS}, 8\ns_add_u32 s82, s82, s83")
                a("v_and_b32 v14, 15, v0\nv_lshlrev_b32 v14, 4, v14\nv_lshl_add_u32 v5, v7, 13, v14\nv_add_u32 v5, s82, v5")
                a(f"s_lshl_b32 s81, s{sCG}, 16\ns_lshr_b32 s82, s{sCS}, 2\ns_lshl_b32 s82, s82, 13\ns_add_u32 s82, s82, s81\ns_lshl_b32 s81, s3, 6\ns_add_u32 s82, s82, s81")
                a("v_lshrrev_b32 v14, 2, v0\nv_lshlrev_b32 v14, 8, v14\nv_and_b32 v15, 3, v0\nv_lshl_add_u32 v6, v15, 4, v14\nv_add_u32 v6, s82, v6\ns_movk_i32 s29, 0x1000")
            else:
                a(f"s_lshl_b32 s81, s{sG}, 16\ns_lshl_b32 s82, s3, 14\ns_add_u32 s82, s82, s81\ns_lshl_b32 s83, s{sS}, 6\ns_add_u32 s82, s82, s83")
                a("v_lshrrev_b32 v14, 2, v0\nv_lshlrev_b32 v14, 11, v14\nv_and_b32 v15, 3, v0\nv_lshl_add_u32 v5, v15, 4, v14\nv_add_u32 v5, s82, v5")
                a(f"s_lshl_b32 s81, s{sCG}, 16\ns_and_b32 s82, s{sCS}, 28\ns_add_u32 s82, s82, s3\ns_lshl_b32 s82, s82, 11\ns_add_u32 s82, s82, s81\nv_add_u32 v6, s82, v6")
                a("s_movk_i32 s29, 0x400")
        elif n >= max(D, P["DI"]) - 1:
            work(BUD)
    vW = [vslot(128 + i) for i in range(6)]
    assert (128 + 5 - NV) // 2 < st["perm"]
    WOL = P["WOL"]
    def tile_loads(first, last):
        for i in range(first, last):
            if i < 4: a(f"s_movk_i32 s81, {4096*i}\nbuffer_load_dwordx4 v[{vW[i]}:{vW[i]+3}], v{vKO}, s[16:19], s81 offen {P['TNT']}")
            else: a(f"s_movk_i32 s81, {8192*(i-4)}\nbuffer_load_dwordx4 v[{vW[i]}:{vW[i]+3}], v251, s[4:7], s81 offen {P['TNT']}")
    def touch():
        a(f"s_mov_b32 exec_hi, 0\nbuffer_load_dword v160, v253, s[16:19], 0 offen {P['PNT']}")
        a(f"s_mov_b32 exec_lo, 0xffff\nbuffer_load_dword v161, v254, s[4:7], 0 offen {P['PNT']}\ns_mov_b64 exec, -1")
    NW = (6, 0, 0, 4, 2, 0, 6)[WOL]
    if WOL == 6:
        a(f"v_cmp_lt_i32 vcc, {P['TW']}, v250")
        a.settle()
        a("s_cbranch_vccz L_TE")
    tile_loads(0, NW)
    if WOL == 6: a.label("L_TE")
    a(f"s_lshl_b32 s81, s3, 4\ns_add_u32 s81, s81, {L_FAC}\nv_mov_b32 v7, s81")
    n = len(seq)
    while work(10**6): pass
    while st["landed"] < n - 1:
        st["landed"] += 1
        left = n - 1 - st["landed"]
        paced = WOL == 5 and 0 < left < P["DW"]
        if seq[st["landed"]][1] % 2 == 1 or paced:
            if left in (1, 6): pad(True)
            if left == P["IXS"]: ix0 = len(a.lines)
            a(f"s_waitcnt vmcnt({left + NW})")
            if WOL == 6:
                a(f"s_cbranch_vccnz L_TL{left}\ns_waitcnt vmcnt({left})")
                if left == 0: tile_loads(0, 6)
                a.label(f"L_TL{left}")
            if paced:
                tile_loads(NW, NW + 1); NW += 1
            if left == 0:
                stamp(3)
                if WOL != 2: tile_loads(NW, 6)
                if P["TR"]:
                    assert st["perm"] == 63 and st["pv"] == 30 and st["ap"] == 16
                    ra, rb = vslot(126), vslot(127)
                    for op in "P0 P4 P1 M0 P5 M4 P2 M1 P6 M5 P3 M2 P7 M6 M3 M7".split():
                        j = int(op[1])
                        d = f"v[{vACC+4*(j//4)}:{vACC+4*(j//4)+3}]"
                        if op[0] == "P": a(f"v_perm_b32 v{vT+4*j+3}, v{rb+j//2}, v{ra+j//2}, s{sHI if j % 2 else sLO}")
                        else: a(f"v_mfma_f32_16x16x32_bf16 {d}, v[{vA+4*(j%4)}:{vA+4*(j%4)+3}], v[{vT+4*j}:{vT+4*j+3}], {d}")
                    st["perm"], st["pv"] = 64, 32
            while work(10**6): pass
    assert st["pv"] == 32 and st["sm"] == 10

    def hold():
        a("s_waitcnt lgkmcnt(0)\ns_add_u32 s81, s84, 4800")
        a.label("L_HOLD")
        a("s_sleep 8\ns_memrealtime s[26:27]\ns_waitcnt lgkmcnt(0)\ns_sub_u32 s26, s26, s81\ns_cmp_lt_i32 s26, 0\ns_cbranch_scc1 L_HOLD")
    if P["NOTAIL"] == 1: hold()
    a(f"ds_write_b128 v3, v[{vACC}:{vACC+3}]\nds_write_b128 v3, v[{vACC+4}:{vACC+7}] offset:1024")
    if P["PF"] and not P["PFL"]: touch()
    a("s_waitcnt lgkmcnt(0)\ns_barrier")
    a("s_mov_b32 exec_lo, -1\ns_mov_b32 exec_hi, 0")
    if LOC: a(f"ds_read_b32 v15, v7 offset:{L_LOC - L_FAC}")
    a(f"ds_read_b128 v[16:19], v7")
    for w in range(4):
        if w == 2: a(f"v_add_u32 v14, {2*RING}, v4")
        a(f"ds_read_b128 v[{20+4*w}:{23+4*w}], v{4 if w < 2 else 14} offset:{(w % 2)*RING}")
    a("s_waitcnt lgkmcnt(3)")
    if LOC: a("v_readfirstlane_b32 s67, v15")
    TR = P["TR"]
    def pk_add(d, x, y, n):
        if TR:
            for i in range(0, n, 2): a(f"v_pk_add_f32 v[{d+i}:{d+i+1}], v[{x+i}:{x+i+1}], v[{y+i}:{y+i+1}]")
        else:
            for i in range(n): a(f"v_add_f32 v{d+i}, v{x+i}, v{y+i}")
    if TR:
        for i in (0, 2): a(f"v_pk_mul_f32 v[{20+i}:{21+i}], v[16:17], v[{20+i}:{21+i}] op_sel_hi:[0,1]")
    else:
        for i in range(4): a(f"v_mul_f32 v{20+i}, v16, v{20+i}")
    for w in range(1, 4):
        a(f"s_waitcnt lgkmcnt({3-w})")
        if TR:
            f0, h = 16 + (w & 2), w & 1
            for i in (0, 2): a(f"v_pk_fma_f32 v[{20+i}:{21+i}], v[{f0}:{f0+1}], v[{20+4*w+i}:{21+4*w+i}], v[{20+i}:{21+i}] op_sel:[{h},0,0] op_sel_hi:[{h},1,1]")
        else:
            for i in range(4): a(f"v_fmac_f32 v{20+i}, v{16+w}, v{20+4*w+i}")
    if LOC: a("s_cmp_eq_u32 s67, 0")
    tag4(20, vD)
    if LOC:
        a(f"s_cbranch_scc1 L_ST1X\nbuffer_store_dwordx4 v[20:23], v5, s[12:15], 0 offen {P['PLS']}")
        a.label("L_ST1D")
    else: a(f"buffer_store_dwordx4 v[20:23], v5, s[12:15], 0 offen {P['P1S']}")
    a("s_mov_b64 exec, -1")
    stamp(4)
    if WOL == 2: tile_loads(0, 6)
    if P["PF"] and P["PFL"]: touch()
    a("ds_read_b32 v18, v252\nv_mov_b32 v19, 0")
    if P["NOTAIL"] == 2: hold()
    def issue1(r):
        a(f"buffer_load_dwordx4 v[{r}:{r+3}], v6, s[12:15], 0 offen {P['P1L']}\nbuffer_load_dwordx4 v[{r+4}:{r+7}], v6, s[12:15], s29 offen {P['P1L']}")
    issue1(144 if P["G1"] else 24)
    pad(True)
    a(f"v_lshlrev_b32 v3, 5, v0\ns_add_u32 s81, s{sLB}, 4096\nv_add_u32 v3, s81, v3")
    a("v_lshrrev_b32 v14, 3, v0\nv_lshlrev_b32 v4, 7, v14\nv_and_b32 v15, 3, v0\nv_lshl_add_u32 v4, v15, 5, v4\nv_bfe_u32 v14, v0, 2, 1\nv_lshl_add_u32 v4, v14, 4, v4")
    a(f"s_and_b32 s81, s{sCS}, 3\ns_lshl_b32 s81, s81, 15\ns_lshl_b32 s82, s{sCG}, 3\ns_lshr_b32 s83, s{sCS}, 2\ns_add_u32 s82, s82, s83\ns_lshl_b32 s82, s82, {9 if P['L2'] else 6}\ns_add_u32 s81, s81, s82\ns_add_u32 s81, s81, {WS_O2}")
    if P["L2"]: a("v_lshl_add_u32 v1, v0, 4, s81")
    else: a("v_lshrrev_b32 v14, 2, v0\nv_lshlrev_b32 v14, 12, v14\nv_lshl_add_u32 v14, v15, 4, v14\nv_add_u32 v1, s81, v14")
    a(f"v_add_u32 v2, {2*RING}, v4")
    if LOC:
        a(f"s_and_b32 s81, s{sG}, 1\ns_lshl_b32 s81, s81, 4\ns_lshl_b32 s81, 0xffff, s81\ns_and_b32 s67, s67, s81")
        a(f"s_lshr_b32 s81, s{sG}, 1\ns_and_b32 s82, s{sS}, 3\ns_cmp_eq_u32 s81, s82\ns_cselect_b32 s67, s67, 0")
        if not P["LO2"]: a("s_mov_b32 s67, 0")
    for j in range(8): a(f"v_mov_b32 v{vT+4*j+3}, 0")
    after = (2 if WOL == 2 else 3) + (2 if P['PF'] and (WOL != 2 or P['PFL']) else 0)
    for p in range(3):
        if TR or p == 0: a(f"s_waitcnt vmcnt({after + (4 - 2 * p if TR else 0)}) lgkmcnt(0)")
        for q in range(4):
            a(f"v_perm_b32 v{vT+8*q+p}, v{vW[2*p+1]+q}, v{vW[2*p]+q}, s{sLO}\nv_perm_b32 v{vT+8*q+4+p}, v{vW[2*p+1]+q}, v{vW[2*p]+q}, s{sHI}")
    if P["G1"]:
        pipe_poll("L_P1", issue1, 2, [144 + 8 * k for k in range(P["G1"])], 24, 14, vD, P["Z1"], 1)
        stamp(5)
    else:
        a("s_branch L_P1CHK")
        pad()
        a.label("L_P1")
        if P["S1"]: a(f"s_sleep {P['S1']}")
        a(f"buffer_load_dwordx4 v[24:27], v6, s[12:15], 0 offen {P['P1L']}\nbuffer_load_dwordx4 v[28:31], v6, s[12:15], s29 offen {P['P1L']}")
        a.label("L_P1CHK")
        a("s_waitcnt vmcnt(0)")
        untag(14, 24, 8, vD)
        spin_tail("L_P1")
        a("s_mov_b64 exec, -1")
        stamp(5)
        pk_add(24, 24, 28, 4)
    quad_scatter_sum(24)
    for i in range(4):
        a(f"v_mov_b32_dpp v{28+i}, v24 quad_perm:[{i},{i},{i},{i}] row_mask:0xf bank_mask:0xf")
    a("v_cvt_pk_bf16_f32 v16, v28, v29\nv_cvt_pk_bf16_f32 v17, v30, v31")
    for j in range(8):
        a(f"v_mfma_f32_16x16x32_bf16 v[{32+4*j}:{35+4*j}], v[16:19], v[{vT+4*j}:{vT+4*j+3}], 0")
    a("s_mov_b64 exec, 0xffff")
    for j in range(0, 8, 2):
        a(f"ds_write2_b32 v3, v{32+4*j}, v{36+4*j} offset0:{j} offset1:{j+1}")
    a("s_waitcnt lgkmcnt(0)\ns_barrier")
    a("s_cmp_lg_u32 s3, 0\ns_cbranch_scc1 L_FINAL")
    a("s_mov_b32 exec_lo, -1\ns_mov_b32 exec_hi, 0")
    for w in range(4):
        a(f"ds_read_b128 v[{20+4*w}:{23+4*w}], v{4 if w < 2 else 2} offset:{(w % 2)*RING+4096}")
    for w in range(1, 4):
        a(f"s_waitcnt lgkmcnt({3-w})")
        pk_add(20, 20, 20 + 4 * w, 4)
    tag4(20, vD)
    if LOC: a("s_not_b32 exec_lo, s67")
    a(f"buffer_store_dwordx4 v[20:23], v1, s[12:15], 0 offen {P['P2S']}")
    stamp(6)
    if LOC: a(f"s_cmp_eq_u32 s67, 0\ns_cbranch_scc1 L_EXIT\ns_mov_b32 exec_lo, s67\nbuffer_store_dwordx4 v[20:23], v1, s[12:15], 0 offen {P['PLS']}")
    a("s_branch L_EXIT")
    pad()
    if LOC:
        a.label("L_ST1X")
        a(f"buffer_store_dwordx4 v[20:23], v5, s[12:15], 0 offen {P['P1S']}\ns_branch L_ST1D")

    a.label("L_FINAL")
    if P["IXS"] < 0: ix0 = len(a.lines)
    a("s_cmp_lg_u32 s3, 1\ns_cbranch_scc1 L_EXIT\ns_cmp_lt_u32 s2, 224\ns_cbranch_scc1 L_EXIT")
    a("s_mov_b64 exec, -1")
    final_index()
    a(f"s_lshl_b32 s29, s{sF}, 12\ns_add_u32 s29, s29, {WS_O2}\nv_lshlrev_b32 v6, 4, v0\nv_lshlrev_b32 v7, 2, v0\nv_add_u32 v7, {L_FIN}, v7")
    a("ds_read_b32 v16, v7")
    a("v_lshrrev_b32 v14, 4, v0\nv_lshlrev_b32 v14, 1, v14\nv_lshl_add_u32 v5, v15, 4, v14")
    if P["L2"]:
        a(f"s_lshr_b32 s29, s{sF}, 3\ns_lshl_b32 s29, s29, 15\ns_and_b32 s83, s{sF}, 7\ns_lshl_b32 s83, s83, 6\ns_add_u32 s29, s29, s83\ns_add_u32 s29, s29, {WS_O2}")
        a("v_lshrrev_b32 v6, 2, v0\nv_lshlrev_b32 v6, 9, v6\nv_lshl_add_u32 v6, v15, 4, v6")
    if P["X2"] == 2:
        hold(); stamp(5)
    if P["G2"]:
        assert P["L2"]
        a("s_add_u32 s26, s29, 8192\ns_add_u32 s27, s29, 16384\ns_add_u32 s81, s29, 24576")
        def issue2(r):
            for i, sb in enumerate((29, 26, 27, 81)): a(f"buffer_load_dwordx4 v[{r+4*i}:{r+4*i+3}], v6, s[12:15], s{sb} offen {P['P2L']}")
        pipe_poll("L_P2", issue2, 4, [176 + 16 * k for k in range(P["G2"])], 24, 14, vD, P["Z2"])
        stamp(6)
    else:
        gather("L_P2", 24, 4, 29, 6, 14, vD, P["S2"], 8192 if P["L2"] else 1024, P["P2L"])
        stamp(6)
        pk_add(24, 24, 32, 8)
        pk_add(24, 24, 28, 4)
    quad_scatter_sum(24)
    a("s_waitcnt lgkmcnt(0)")
    a("v_add_f32 v24, v16, v24\nv_cvt_pk_bf16_f32 v24, v24, v24")
    a("s_mov_b32 exec_lo, 0x000f000f\ns_mov_b32 exec_hi, 0x000f000f")
    a("buffer_store_short v24, v5, s[20:23], s82 offen")
    a(f"s_cmp_lg_u32 s2, 224\ns_cbranch_scc1 L_NOE\ns_mov_b64 exec, 1\nv_mov_b32 v24, s{sE}\nv_mov_b32 v5, {WS_E}\nbuffer_store_dword v24, v5, s[12:15], 0 offen")
    a.label("L_NOE")
    if DBG: a("s_waitcnt vmcnt(0)")
    if P["IX"]:
        body, out, safe, cnt = a.lines[ix0:], [], True, P["IX"]
        for ln in body:
            t = ln.strip()
            if t.startswith("L_P2D") or t.startswith("L_P1D"): safe = False
            if safe and cnt >= P["IX"] and not t.endswith(":"):
                out += [f"L_IW{pads[0]}:", f"    s_cbranch_execz L_IW{pads[0]+1}"]
                pads[0] += 1; cnt = 0
            out.append(ln)
            if not t.endswith(":"):
                cnt += 8 if re.match(r"buffer_|ds_|v_mfma|v_pk_|v_perm_|v_or3|v_and_or|v_lshl_add|v_cvt_pk|v_bfe|s_mem|.*dpp|.*0x|.*\b\d{3,}$", t) else 4
            if t.startswith("s_wqm_b64 exec"): safe = False
            if t.startswith("s_mov_b64 exec, -1") or t.startswith("s_mov_b64 exec, s[24:25]"): safe = True
        a.lines[ix0:] = out
    a.label("L_EXIT")
    if P["G1"] or P["G2"] or P["X2"]: a("s_waitcnt vmcnt(0)")
    stamp(8)
    dump_stamps()
    a("s_endpgm")

    a.label("L_HELP")
    srd(12, pWS, WS_BYTES)
    load_epoch()
    a(f"v_mov_b32 v{hA}, -1\nv_mov_b32 v{hA+1}, -1\nv_lshrrev_b32 v7, 4, v0")
    a(f"v_lshlrev_b32 v6, 3, v0\nv_add_u32 v6, {L_ML}, v6\ns_mov_b64 exec, 0x1ffff\nds_write_b64 v6, v[{hA}:{hA+1}]\ns_mov_b64 exec, -1")
    a("s_waitcnt vmcnt(19)")
    vM, vR, vX = 200, 201, 202
    for i in range(4): unpack(hU + 2 * i, hU + 2 * i + 1, hXA + i)
    def allsum(x, t):
        for r in (1, 2, 4, 8): dpp("v_add_f32", x, f"row_ror:{r}")
        rows_allreduce("v_add_f32", x, t)
    a(f"v_add_f32 v{vM}, v{hU}, v{hU+1}")
    for i in range(2, 8): a(f"v_add_f32 v{vM}, v{vM}, v{hU+i}")
    allsum(vM, vX)
    a(f"v_mul_f32 v{vM}, 0x3b000000, v{vM}")
    for i in range(8): a(f"v_sub_f32 v{hU+i}, v{hU+i}, v{vM}")
    a(f"v_mul_f32 v{vR}, v{hU}, v{hU}")
    for i in range(1, 8): a(f"v_fmac_f32 v{vR}, v{hU+i}, v{hU+i}")
    allsum(vR, vX)
    a(f"v_mul_f32 v{vR}, 0x3b000000, v{vR}")
    rnd1(vM); rnd1(vR)
    a(f"v_add_f32 v{vR}, 0x3727c5ac, v{vR}"); rnd1(vR)
    a(f"v_sqrt_f32 v{vR}, v{vR}"); rnd1(vR)
    a(f"v_rcp_f32 v{vR}, v{vR}")

    def normalise(x, n):
        for i in range(n): unpack(hU + 2 * i, hU + 2 * i + 1, x + i)
        for i in range(2 * n): a(f"v_sub_f32 v{hU+i}, v{hU+i}, v{vM}")
        for i in range(n): a(f"v_cvt_pk_bf16_f32 v{x+i}, v{hU+2*i}, v{hU+2*i+1}")
        for i in range(n): unpack(hU + 2 * i, hU + 2 * i + 1, x + i)
        for i in range(2 * n): a(f"v_mul_f32 v{hU+i}, v{hU+i}, v{vR}")
        for i in range(n): a(f"v_cvt_pk_bf16_f32 v{x+i}, v{hU+2*i}, v{hU+2*i+1}")

    def gemv(acc, w, npair, xsrc, tmp, waits=None):
        for p in range(npair):
            if waits: a(f"s_waitcnt vmcnt({waits(p)})")
            ra, rb = w + 8 * p, w + 8 * p + 4
            for q in range(4):
                a(f"v_perm_b32 v{tmp+2*q}, v{rb+q}, v{ra+q}, s{sLO}\nv_perm_b32 v{tmp+2*q+1}, v{rb+q}, v{ra+q}, s{sHI}")
            for j in range(8):
                a(f"v_dot2_f32_bf16 v{acc+j}, v{tmp+j}, {xsrc(p)}, {'0' if p == 0 else f'v{acc+j}'}")

    def publish64(x, soff):
        for j in range(4): a(f"v_permlane32_swap_b32 v{x+j}, v{x+4+j}")
        for j in range(4): a(f"v_add_f32 v{x+j}, v{x+j}, v{x+4+j}")
        for j in range(4): a(f"v_mov_b32 v{x+4+j}, v{x+j}")
        for j in range(4): a(f"v_permlane16_swap_b32 v{x+j}, v{x+4+j}")
        for j in range(4): a(f"v_add_f32 v{x+j}, v{x+j}, v{x+4+j}")
        for j in range(4): dpp("v_add_f32", x + j, "row_ror:8")
        tag4(x, hT)
        a(f"s_mov_b32 exec_lo, 0xff\ns_mov_b32 exec_hi, 0xff\nbuffer_store_dwordx4 v[{x}:{x+3}], v2, s[12:15], s{soff} offen sc1\ns_mov_b64 exec, -1")

    a("s_waitcnt vmcnt(16) lgkmcnt(0)")
    normalise(hXQ, 8)
    make_tags(hT)
    a("v_lshrrev_b32 v2, 5, v0\nv_lshl_add_u32 v2, v2, 7, v4")
    a(f"s_lshl_b32 s29, s{sG}, 13\ns_add_u32 s29, s29, {WS_Q}\ns_lshl_b32 s82, s{sCS}, 8\ns_lshl_b32 s83, s{sCG}, 13\ns_add_u32 s82, s82, s83\ns_add_u32 s82, s82, {WS_Q}")
    gemv(hA, hW, 8, lambda p: f"v{hXQ+p}", hU, lambda p: 14 - 2 * p)
    publish64(hA, 82)
    stamp(1)

    def mlp_first():
        a("s_cmp_ge_u32 s2, 224\ns_cbranch_scc1 L_NOW1")
        srd(4, pW1, 512 * 3584)
        a(f"s_and_b32 s81, s2, 7\ns_mul_i32 s81, s81, {64*3584}\ns_lshr_b32 s83, s2, 3\ns_lshl_b32 s83, s83, 7\ns_add_u32 s81, s81, s83")
        a("v_mul_u32_u24 v3, 28672, v1\nv_add_u32 v3, v3, v4")
        for e in range(8):
            a(f"buffer_load_dwordx4 v[{hW1+4*e}:{hW1+4*e+3}], v3, s[4:7], s81 offen {WNT}")
            if e < 7: a("s_addk_i32 s81, 3584")
        normalise(hXF, 4)
        a(f"s_lshl_b32 s82, s2, 8\ns_add_u32 s82, s82, {WS_H}")
        gemv(hA, hW1, 4, lambda p: f"v{hXF+p}", hU, lambda p: 6 - 2 * p)
        if not P["NOH"]: publish64(hA, 82)
        a.settle()
        a.label("L_NOW1")
        stamp(4)

    if not P["W1L"]: mlp_first()

    a(f"v_lshlrev_b32 v3, 7, v7\nv_add_u32 v3, v3, v4\nv_bfe_u32 v6, v0, 3, 1\nv_lshl_add_u32 v3, v6, 3, v3\nv_add_u32 v3, {L_Q}, v3")
    gather("L_H0", hW, 8, 29, 5, vX, hT, P["QSLEEP"])
    stamp(2)
    for j in range(16): a(f"v_add_f32 v{hW+j}, v{hW+j}, v{hW+16+j}")
    for j in range(8): a(f"v_add_f32 v{hW+j}, v{hW+j}, v{hW+8+j}")
    for j in range(4): a(f"v_cvt_pk_bf16_f32 v{hW+j}, v{hW+2*j}, v{hW+2*j+1}")
    a(f"ds_write_b64 v3, v[{hW}:{hW+1}]\nds_write_b64 v3, v[{hW+2}:{hW+3}] offset:512\ns_waitcnt lgkmcnt(0)")
    stamp(3)
    a("s_barrier")
    if P["W1L"]: mlp_first()

    a(f"v_and_b32 v3, 15, v0\nv_lshlrev_b32 v6, 3, v3\nv_add_u32 v6, {L_ML}, v6")
    a.label("L_H2")
    a("s_sleep 4\nds_read_b64 v[8:9], v6\ns_waitcnt lgkmcnt(0)\nv_max_u32 v10, v8, v9\nv_cmp_eq_u32 vcc, -1, v10")
    spin_tail("L_H2")
    a("v_mov_b32 v12, v8")
    dpp("v_max_f32", 12, "row_ror:4"); dpp("v_max_f32", 12, "row_ror:8")
    a("v_sub_f32 v13, v8, v12\nv_mul_f32 v13, 0x3fb8aa3b, v13\nv_exp_f32 v13, v13\nv_mul_f32 v13, v13, v9")
    dpp("v_add_f32", 13, "row_ror:4"); dpp("v_add_f32", 13, "row_ror:8")
    if LOC: a("s_getreg_b32 s67, hwreg(HW_REG_XCC_ID, 0, 4)\ns_lshl_b32 s67, s67, 4\nv_mov_b32 v14, s67\nv_mov_b32 v15, 0")
    else: a("v_mov_b32 v14, 0\nv_mov_b32 v15, 0")
    tag4(12, hT)
    a(f"s_lshl_b32 s32, s{sG}, {11+P['LM']}\ns_add_u32 s32, s32, {WS_ML}\ns_lshl_b32 s81, s{sS}, {6+P['LM']}\ns_add_u32 s81, s81, s32")
    a("v_lshrrev_b32 v1, 2, v0\nv_lshlrev_b32 v1, 7, v1\nv_and_b32 v2, 3, v0\nv_lshl_add_u32 v1, v2, 4, v1")
    if not P["NOML"]: a("s_mov_b64 exec, 15\nbuffer_store_dwordx4 v[12:15], v5, s[12:15], s81 offen sc1\ns_mov_b64 exec, -1")
    stamp(6)

    remap(P["CM"])
    for j in range(4): a(f"v_mov_b32 v{hW+j}, 0")
    a(f"s_cmp_eq_u32 s{sCG}, 7\ns_cbranch_scc1 L_NOH")
    srd(16, pB1, 3584)
    a(f"s_lshl_b32 s81, s{sCG}, 2\ns_lshr_b32 s82, s{sCS}, 3\ns_add_u32 s81, s81, s82\ns_and_b32 s82, s{sCS}, 4")
    a(f"s_lshl_b32 s29, s81, 11\ns_lshl_b32 s83, s82, 5\ns_add_u32 s29, s29, s83\ns_add_u32 s29, s29, {WS_H}")
    a("s_lshl_b32 s81, s81, 7\ns_lshl_b32 s82, s82, 1\ns_add_u32 s81, s81, s82\nbuffer_load_dwordx2 v[204:205], v4, s[16:19], s81 offen")
    a("v_lshrrev_b32 v3, 3, v0\nv_lshl_add_u32 v3, v3, 8, v4")
    gather("L_H5", hW, 1, 29, 3, vX, hT, P["QSLEEP"])
    for j in range(4): dpp("v_add_f32", hW + j, "row_ror:8")
    for sw in ("v_permlane16_swap_b32", "v_permlane32_swap_b32"):
        for j in range(4): a(f"v_mov_b32 v{hW+4+j}, v{hW+j}")
        for j in range(4): a(f"{sw} v{hW+j}, v{hW+4+j}")
        for j in range(4): a(f"v_add_f32 v{hW+j}, v{hW+j}, v{hW+4+j}")
    def rnd4(x, t):
        a(f"v_cvt_pk_bf16_f32 v{t}, v{x}, v{x+1}\nv_cvt_pk_bf16_f32 v{t+1}, v{x+2}, v{x+3}")
        unpack(x, x + 1, t); unpack(x + 2, x + 3, t + 1)
    rnd4(hW, hW + 8)
    unpack(hW + 4, hW + 5, 204); unpack(hW + 6, hW + 7, 205)
    for j in range(4): a(f"v_add_f32 v{hW+j}, v{hW+j}, v{hW+4+j}")
    rnd4(hW, hW + 8)
    for op in ("v_mul_f32 {t}, {x}, {x}", "v_mul_f32 {t}, {t}, {x}", "v_mul_f32 {t}, 0x3d372713, {t}", "v_add_f32 {t}, {x}, {t}",
               "v_mul_f32 {t}, 0xc0135761, {t}", "v_exp_f32 {t}, {t}", "v_add_f32 {t}, 1.0, {t}", "v_rcp_f32 {t}, {t}", "v_mul_f32 {x}, {x}, {t}",
               "v_cvt_pk_bf16_f32 {x}, {x}, {x}"):
        for j in range(4): a(op.format(x=f"v{hW+j}", t=f"v{hW+4+j}"))
    a.settle()
    a.label("L_NOH")
    a(f"v_lshrrev_b32 v3, 1, v0\nv_lshlrev_b32 v3, 4, v3\nv_and_b32 v6, 1, v0\nv_lshl_add_u32 v3, v6, 1, v3\nv_add_u32 v3, {L_H}, v3\ns_mov_b64 exec, 0xff")
    for j in range(4): a(f"ds_write_b16 v3, v{hW+j} offset:{4*j}")
    a("s_mov_b64 exec, -1")
    stamp(5)

    a("s_cmp_lt_u32 s2, 224\ns_cbranch_scc1 L_NOFIN")
    srd(4, pX, 1024); srd(8, pB2, 1024)
    final_index()
    a("v_and_b32 v3, 3, v0\nv_lshlrev_b32 v3, 4, v3\nv_lshl_add_u32 v3, v7, 1, v3")
    a("buffer_load_ushort v204, v3, s[4:7], s82 offen\nbuffer_load_ushort v206, v3, s[8:11], s82 offen")
    a(f"v_lshlrev_b32 v3, 2, v0\nv_add_u32 v3, {L_FIN}, v3\ns_waitcnt vmcnt(0)")
    a("v_lshlrev_b32 v206, 16, v206\nv_lshlrev_b32 v204, 16, v204\nv_add_f32 v204, v204, v206\nds_write_b32 v3, v204")
    a.settle()
    a.label("L_NOFIN")

    if P["WOT"]:
        srd(16, pWO, 4 << 20)
        a(f"s_lshl_b32 s81, s{sG}, 19\ns_lshr_b32 s82, s{sS}, 2\ns_lshl_b32 s82, s82, 16\ns_add_u32 s81, s81, s82")
        a(f"s_and_b32 s82, s{sS}, 3\ns_lshl_b32 s82, s82, 8\ns_add_u32 s81, s81, s82\nv_mov_b32 v6, 0\nbuffer_load_dword v207, v6, s[16:19], s81 offen")
    if P["IW"] or P["IX"]:
        if P["IX"]: a("s_mov_b64 exec, 0")
        a("s_branch L_IW0")
        a.label(f"L_IW{pads[0]}")
        if P["IX"]: a("s_mov_b64 exec, -1")
    a(f"v_mov_b32 v6, {L_GO}")
    a.label("L_H4")
    a("s_sleep 4\nds_read_b32 v10, v6\ns_waitcnt lgkmcnt(0)\nv_cmp_eq_u32 vcc, -1, v10")
    spin_tail("L_H4")
    if not P["NOML"]: gather("L_H3", 12, 2, 32, 1 if P["LM"] else 5, vX, hT, P["QSLEEP"], 1024 << P["LM"])
    if LOC:
        a("v_xor_b32 v14, s67, v14\nv_xor_b32 v18, s67, v18\nv_or_b32 v14, v14, v18\nv_cmp_ne_u32 vcc, 0, v14")
        a.settle()
        a("s_cmp_eq_u64 vcc, 0\ns_cselect_b32 s67, -1, 0")
        if LOC > 1: a(f"s_mov_b32 s67, {-1 if LOC == 2 else 0}")
        a("v_mov_b32 v14, s67")
    a("v_max_f32 v10, v12, v16")
    dpp("v_max_f32", 10, "row_ror:4"); dpp("v_max_f32", 10, "row_ror:8")
    rows_allreduce("v_max_f32", 10, 11)
    a("v_sub_f32 v12, v12, v10\nv_sub_f32 v16, v16, v10\nv_sub_f32 v8, v8, v10")
    a("v_mul_f32 v12, 0x3fb8aa3b, v12\nv_mul_f32 v16, 0x3fb8aa3b, v16\nv_mul_f32 v8, 0x3fb8aa3b, v8")
    a("v_exp_f32 v12, v12\nv_exp_f32 v16, v16\nv_exp_f32 v8, v8")
    a("v_mul_f32 v12, v12, v13\nv_fmac_f32 v12, v16, v17")
    dpp("v_add_f32", 12, "row_ror:4"); dpp("v_add_f32", 12, "row_ror:8")
    rows_allreduce("v_add_f32", 12, 11)
    a("v_rcp_f32 v12, v12\nv_mul_f32 v8, v8, v12")
    a(f"v_and_b32 v6, 3, v0\nv_lshlrev_b32 v6, 4, v6\nv_and_b32 v9, 12, v0\nv_add3_u32 v6, v6, v9, 0\nv_add_u32 v6, {L_FAC}, v6")
    a("s_mov_b64 exec, 0xffff\nds_write_b32 v6, v8")
    if LOC: a(f"ds_write_b32 v6, v14 offset:{L_LOC - L_FAC}")
    a("s_waitcnt lgkmcnt(0)")
    stamp(7)
    a("s_branch L_EXIT")

    if CD:
        CP, LS, GL = P["CP"], P["CST"], P["CX"] == 5
        G6 = P["CX"] == 6
        a.label("L_CTRL")
        a(f"v_lshlrev_b32 v1, 4, v0\nv_add_u32 v1, {L_PR}, v1")
        for i in range(4): a(f"v_mov_b32 v{4+i}, 0")
        a("ds_write_b128 v1, v[4:7]\nds_write_b128 v1, v[4:7] offset:1024")
        a("s_waitcnt lgkmcnt(0)")
        srd(12, pWS, WS_BYTES)
        load_epoch()
        a(f"s_mul_i32 s81, s{sG}, {LS}\ns_add_u32 s81, s81, {WS_PR}\nv_lshl_add_u32 v2, v0, 2, s81\nv_mov_b32 v10, {4*R - 2*CP}")
        a(f"s_mov_b32 exec_lo, 0\nv_and_b32 v2, 7, v0\nv_mul_u32_u24 v2, {LS}, v2\nv_add_u32 v2, {WS_PR + 8*LS}, v2\nv_mov_b32 v10, 0\ns_mov_b32 exec_lo, -1")
        a(f"s_lshl_b64 s[16:17], 1, s{sS}\ns_lshl_b32 s21, 1, s{sG}\ns_andn2_b32 s22, {255 if GL else 0}, s21")
        a(f"s_lshl_b32 s81, s{sG}, 2\ns_xor_b32 s81, s81, s{sS}\ns_and_b32 s81, s81, {P['CM5']}\ns_cselect_b32 s21, 0, s21")
        a(f"s_lshl_b32 s81, s{sS}, 3\ns_add_u32 s81, s81, s{sG}\ns_mul_i32 s81, s81, {4*CP}\ns_lshr_b32 s81, s81, 8\ns_add_u32 s26, s81, {4*R}")
        if G6:
            a(f"v_add_u32 v11, {8*LS}, v2\ns_mov_b32 exec_lo, 0\nv_mov_b32 v11, v2\ns_mul_i32 s81, s{sG}, {LS}\ns_add_u32 s81, s81, {WS_PR + 128}\nv_mov_b32 v2, s81\ns_mov_b32 exec_lo, -1")
            a(f"s_lshl_b32 s21, 1, s{sG}\ns_andn2_b32 s21, 255, s21\ns_mov_b32 s22, 1")
            a(f"s_lshl_b32 s81, s{sG}, 2\ns_sub_u32 s23, s{sS}, s81\ns_and_b32 s23, s23, 31\ns_mul_i32 s23, s23, {P['CK']}")
        a(f"s_bitcmp0_b32 s{sG}, 0\ns_cselect_b32 s20, {P['CC'] + P['CB']}, {P['CC']}")
        a(f"s_waitcnt lgkmcnt(0)\ns_add_u32 s{sE}, s{sE}, 0x9b35e3c1\ns_lshl_b32 s{sE}, s{sE}, 10\ns_movk_i32 s18, 0x400\ns_not_b32 s19, s{sE}")
        a("s_barrier")
        a.label("L_C0")
        a(f"s_sleep {P['CSL']}\nds_read_b32 v3, v1\ns_sub_u32 s{sSPIN}, s{sSPIN}, 1\ns_cbranch_scc1 L_EXIT\ns_waitcnt lgkmcnt(0)")
        a("v_readlane_b32 s8, v3, 0\nv_readlane_b32 s9, v3, 16\nv_readlane_b32 s10, v3, 32\nv_readlane_b32 s11, v3, 48")
        a("s_add_u32 s8, s8, s9\ns_add_u32 s10, s10, s11\ns_add_u32 s8, s8, s10\ns_cmp_lt_u32 s8, s26\ns_cbranch_scc1 L_C0")
        a(f"s_add_u32 s26, s26, {4*CP}\ns_or_b32 s9, s8, s{sE}\nv_mov_b32 v9, s9\nv_mov_b32 v4, s19")
        a(f"s_mov_b32 exec_hi, s22\nbuffer_load_dword v4, v2, s[12:15], 0 offen {P['CLP']}")
        a(f"s_mov_b64 exec, s[16:17]\nbuffer_store_dword v9, v2, s[12:15], 0 offen {P['CSP']}\ns_mov_b64 exec, -1")
        a(f"v_lshlrev_b32 v5, 2, v3\nv_add_u32 v3, s20, v3\ns_waitcnt vmcnt(1)")
        a(f"v_xor_b32 v4, s{sE}, v4\nv_cmp_gt_u32 vcc, s18, v4\nv_cndmask_b32 v4, v10, v4, vcc")
        for r in (1, 2, 4, 8): dpp("v_add_u32", 4, f"row_ror:{r}")
        a("v_readlane_b32 s8, v4, 0\nv_readlane_b32 s9, v4, 16\nv_readlane_b32 s10, v4, 32")
        a(f"s_add_u32 s8, s8, s9\ns_lshr_b32 s8, s8, 5\ns_add_u32 s8, s8, {2*CP}")
        if GL:
            a(f"s_min_u32 s9, s8, 0x3ff\ns_or_b32 s9, s9, s{sE}\nv_mov_b32 v9, s9")
            a(f"s_mov_b32 exec_lo, 0\ns_mov_b32 exec_hi, s21\ns_cbranch_execz L_C1\nbuffer_store_dword v9, v2, s[12:15], 0 offen {P['CGP']}")
            a.label("L_C1")
            a("s_mov_b64 exec, -1\ns_bcnt1_i32_b32 s11, vcc_hi")
            a(f"s_sub_u32 s9, {P['CR']}, s8\ns_mul_i32 s9, s9, s11\ns_add_u32 s9, s9, s10\ns_ashr_i32 s9, s9, {P['CW']}\ns_add_u32 s8, s8, s9")
        if G6:
            a("s_sub_u32 s10, s10, 0x200\ns_cmp_eq_u32 vcc_hi, 0\ns_cselect_b32 s10, 0, s10")
            a("s_sub_u32 s23, s23, 1\ns_cbranch_scc0 L_C1")
            a(f"s_min_u32 s9, s8, 0x3ff\ns_or_b32 s9, s9, s{sE}\nv_mov_b32 v9, s9\nv_mov_b32 v4, s19")
            a(f"s_mov_b32 exec_lo, 0\ns_mov_b32 exec_hi, s21\nbuffer_load_dword v4, v11, s[12:15], 0 offen {P['CGL']}")
            a(f"s_mov_b32 exec_lo, -1\ns_mov_b32 exec_hi, 0\nbuffer_store_dword v9, v11, s[12:15], 0 offen {P['CGP']}\ns_mov_b64 exec, -1\ns_waitcnt vmcnt(1)")
            a(f"v_xor_b32 v4, s{sE}, v4\nv_cmp_gt_u32 vcc, s18, v4\nv_cndmask_b32 v4, v10, v4, vcc")
            for r in (1, 2, 4, 8): dpp("v_add_u32", 4, f"row_ror:{r}")
            a("v_readlane_b32 s10, v4, 32\ns_bcnt1_i32_b32 s11, vcc_hi")
            a(f"s_sub_u32 s9, {P['CR']}, s8\ns_mul_i32 s9, s9, s11\ns_add_u32 s9, s9, s10\ns_ashr_i32 s10, s9, {P['CW']}")
            a(f"s_add_u32 s9, s10, 0x200\ns_and_b32 s9, s9, 0x3ff\ns_or_b32 s9, s9, s{sE}\nv_mov_b32 v9, s9")
            a("s_mov_b32 exec_lo, 0\ns_mov_b32 exec_hi, 1\nbuffer_store_dword v9, v2, s[12:15], 0 offen\ns_mov_b64 exec, -1")
            a.label("L_C1")
            a("s_add_u32 s8, s8, s10")
        a(f"v_sub_u32 v5, s8, v5\nv_mul_i32_i24 v5, {P['CG']}, v5\nv_ashrrev_i32 v5, 2, v5\nv_add_u32 v4, v5, v3")
        a("v_mov_b32 v5, v4\nv_mov_b32 v6, v4\nv_mov_b32 v7, v4\nds_write_b128 v1, v[4:7] offset:1024")
        a(f"s_cmp_lt_u32 s26, {4*P['CE']}\ns_cbranch_scc1 L_C0\ns_waitcnt lgkmcnt(0)\ns_branch L_EXIT")

    a.raw(f""".section .rodata,"a"
.p2align 6
.amdhsa_kernel {NAME}_kernel
  .amdhsa_next_free_vgpr 256
  .amdhsa_next_free_sgpr 102
  .amdhsa_accum_offset 256
  .amdhsa_group_segment_fixed_size 0
  .amdhsa_kernarg_size 104
  .amdhsa_user_sgpr_count 2
  .amdhsa_user_sgpr_kernarg_segment_ptr 1
  .amdhsa_system_sgpr_workgroup_id_x 1
  .amdhsa_float_denorm_mode_32 3
.end_amdhsa_kernel""")
    return a.text(), LDS, forced


if __name__ == "__main__":
    kw = {}
    out = f"cdna_kernels/{NAME}.s"
    for arg in sys.argv[1:]:
        k, v = arg.split("=")
        if k == "out": out = v
        else: kw[k] = int(v) if v.lstrip("-").isdigit() else v
    text, lds, forced = gen(**kw)
    open(out, "w").write(text)
    print("wrote", out, len(text), "bytes, lds", lds, "forced", forced)
```
